```python
import torch

def _softmax(x, axis=-1):
    return torch.softmax(x, dim=axis)
def _gelu(x):
    return torch.nn.functional.gelu(x, approximate="tanh")
def _silu(x):
    return torch.nn.functional.silu(x)
def _sigmoid(x):
    return torch.sigmoid(x)
def _layernorm(x, axis=-1, eps=1e-5):
    m = x.mean(dim=axis, keepdim=True)
    v = x.var(dim=axis, keepdim=True, unbiased=False)
    return (x - m) / torch.sqrt(v + eps)
def _scatter_add(tgt, idx, src, axis=0):
    return tgt.clone().index_add_(axis, idx, src)
def _segment_sum(src, seg, n):
    out = torch.zeros((n,) + src.shape[1:], dtype=src.dtype)
    return out.index_add_(0, seg, src)
def _pad(x, pw):
    flat = tuple(v for pair in reversed(pw) for v in pair)
    return torch.nn.functional.pad(x, flat)

kernel_name = 'parallel_sum__sliding_local_dilated__glu_gated_reglu__prompt'

def setup_inputs():

    _w = (lambda a: (lambda t: t.to(torch.bfloat16) if t.is_floating_point() else t)(torch.as_tensor(a)))
    def _A_setup():
        B, S, D = 1, 2048, 576
        return {
            "x": _w((lambda *s: torch.randn(*s, dtype=torch.bfloat16) * 0.05)(B, S, D)),
            "wqkv": _w((lambda *s: torch.randn(*s, dtype=torch.bfloat16) * 0.05)(D, 3 * D)),
            "wo": _w((lambda *s: torch.randn(*s, dtype=torch.bfloat16) * 0.05)(D, D)),
        }
    _A_in = _A_setup()

    def _B_setup():
        B, S, D, F = 1, 2048, 576, 4608
        return {
            "x": _w((lambda *s: torch.randn(*s, dtype=torch.bfloat16) * 0.05)(B, S, D)),
            "W_gate": _w((lambda *s: torch.randn(*s, dtype=torch.bfloat16) * 0.8)(D, F) * (2.0 / D) ** 0.5),
            "W_up": _w((lambda *s: torch.randn(*s, dtype=torch.bfloat16) * 0.8)(D, F) * (2.0 / D) ** 0.5),
            "W_down": _w((lambda *s: torch.randn(*s, dtype=torch.bfloat16) * 0.8)(F, D) * (1.0 / F) ** 0.5),
        }
    _B_in = _B_setup()

    return {
        "A_x": _A_in["x"],
        "A_wqkv": _A_in["wqkv"],
        "A_wo": _A_in["wo"],
        "B_x": _B_in["x"],
        "B_W_gate": _B_in["W_gate"],
        "B_W_up": _B_in["W_up"],
        "B_W_down": _B_in["W_down"],
    }

def reference(A_x, A_wqkv, A_wo, B_x, B_W_gate, B_W_up, B_W_down):
    def _A_ref(x, wqkv, wo):
        B, S, D = x.shape
        H = 32; Dh = D // H
        W, dil = 8, 2
        qkv = (lambda x, *d: x.permute(*d))((x @ wqkv).reshape(B, S, 3, H, Dh), 2, 0, 3, 1, 4)
        q, k, v = qkv[0], qkv[1], qkv[2]
        scale = Dh ** -0.5
        pos = torch.arange(S)
        off = torch.arange(W) * dil
        idx = pos[:, None] - off[None, :]
        mask = idx >= 0
        idx_c = torch.where(mask, idx, 0).reshape(-1)
        kg = k[:, :, idx_c, :].reshape(B, H, S, W, Dh)
        vg = v[:, :, idx_c, :].reshape(B, H, S, W, Dh)
        logits = torch.einsum("bhsd,bhswd->bhsw", q, kg) * scale
        logits = torch.where(mask[None, None, :, :], logits, -1e9)
        attn = _softmax(logits, axis=-1)
        o = torch.einsum("bhsw,bhswd->bhsd", attn, vg)
        return (lambda x, *d: x.permute(*d))(o, 0, 2, 1, 3).reshape(B, S, D) @ wo

    def _B_ref(x, W_gate, W_up, W_down):
        gate = torch.einsum("bsd,df->bsf", x, W_gate)
        up = torch.einsum("bsd,df->bsf", x, W_up)
        gate = gate * (lambda x, dt: x.to(dt))(gate > 0, gate.dtype)
        h = gate * up
        return torch.einsum("bsf,fd->bsd", h, W_down)

    x = A_x
    xn = _layernorm(x, axis=-1)
    return x + _A_ref(xn, A_wqkv, A_wo) + _B_ref(xn, B_W_gate, B_W_up, B_W_down)
```

```python
import sys

NAME = "parallel_sum__sliding_local_dilated__glu_gated_reglu__prompt"
XN_OFF = 0
HO_OFF = 4 << 20
PART_OFF = 32 << 20
XN_BYTES = 128 * 18 * 1024
HO_BYTES = 128 * 162 * 1024
PART_BYTES = 4 * 2048 * 576 * 4


class A:
    def __init__(self):
        self.L = []
        self.vm = []
        self.lg = []

    def __call__(self, s):
        self.L.append("    " + s)

    def lab(self, s):
        self.L.append(s + ":")

    def c(self, s):
        self.L.append("    ; " + s)

    def raw(self, s):
        self.L.append(s)

    def reset(self):
        self.vm = []
        self.lg = []

    def vmi(self, instr, tag):
        self(instr)
        self.vm.append(tag)

    def lgi(self, instr, tag):
        self(instr)
        self.lg.append(tag)

    def wait_vm(self, tag):
        idx = [i for i, t in enumerate(self.vm) if t == tag]
        if not idx:
            return
        i = idx[-1]
        n = len(self.vm) - (i + 1)
        assert n <= 63, n
        self(f"s_waitcnt vmcnt({n})")
        self.vm = self.vm[i + 1:]

    def wait_lg(self, tag):
        idx = [i for i, t in enumerate(self.lg) if t == tag]
        if not idx:
            return
        i = idx[-1]
        n = len(self.lg) - (i + 1)
        assert n <= 15, n
        self(f"s_waitcnt lgkmcnt({n})")
        self.lg = self.lg[i + 1:]

    def srd(self, s, plo, nbytes, add=0):
        if add:
            self(f"s_add_u32 s{s}, s{plo}, {add}")
            self(f"s_addc_u32 s{s+1}, s{plo+1}, 0")
            self(f"s_and_b32 s{s+1}, s{s+1}, 0xffff")
        else:
            self(f"s_mov_b32 s{s}, s{plo}")
            self(f"s_and_b32 s{s+1}, s{plo+1}, 0xffff")
        self(f"s_mov_b32 s{s+2}, {nbytes}")
        self(f"s_mov_b32 s{s+3}, 0x00020000")

    def vdiv(self, dst, src, d, maxv, tmp_s):
        for sh in range(8, 24):
            m = -(-(1 << sh) // d)
            if m >= (1 << 24) or maxv * m >= (1 << 32):
                continue
            if all((x * m) >> sh == x // d for x in range(maxv)):
                break
        else:
            raise Exception("no magic")
        self(f"s_mov_b32 s{tmp_s}, {m}")
        self(f"v_mul_u32_u24 v{dst}, s{tmp_s}, v{src}")
        self(f"v_lshrrev_b32 v{dst}, {sh}, v{dst}")


def kd(name, vgpr, sgpr, accum):
    return f""".section .rodata,"a"
.p2align 6
.amdhsa_kernel {name}
  .amdhsa_next_free_vgpr {vgpr}
  .amdhsa_next_free_sgpr {sgpr}
  .amdhsa_accum_offset {accum}
  .amdhsa_group_segment_fixed_size 0
  .amdhsa_kernarg_size 80
  .amdhsa_user_sgpr_count 2
  .amdhsa_user_sgpr_kernarg_segment_ptr 1
  .amdhsa_system_sgpr_workgroup_id_x 1
.end_amdhsa_kernel
.text
"""


def head(a, name):
    a.raw(f".globl {name}")
    a.raw(".p2align 8")
    a.raw(f".type {name},@function")
    a.lab(name)
    a.reset()


def bf16_round_f32(a, v, tmp):
    a(f"v_cvt_pk_bf16_f32 v{tmp}, v{v}, v{v}")
    a(f"v_lshlrev_b32 v{v}, 16, v{tmp}")


def gen_ln(a):
    name = "ln_kernel"
    head(a, name)
    a("s_cmp_ge_u32 s2, 128")
    a("s_cbranch_scc1 L_ln_end")
    a("s_load_dwordx2 s[4:5], s[0:1], 0")
    a("s_load_dwordx2 s[6:7], s[0:1], 72")
    a("v_and_b32 v1, 15, v0")
    a("v_lshrrev_b32 v2, 4, v0")
    a("v_mul_u32_u24 v3, 1152, v1")
    a("v_lshl_add_u32 v3, v2, 4, v3")
    a("s_mul_i32 s3, s2, 18432")
    a("v_mov_b32 v4, 0x3f803f80")
    a("v_lshlrev_b32 v14, 4, v0")
    a("v_xor_b32 v15, 16, v0")
    a("v_lshlrev_b32 v15, 2, v15")
    a("v_xor_b32 v13, 32, v0")
    a("v_lshlrev_b32 v13, 2, v13")
    a("s_waitcnt lgkmcnt(0)")
    a.srd(8, 4, 2048 * 1152)
    a.srd(12, 6, XN_BYTES, XN_OFF)
    B = 16
    for kb in range(18):
        a.vmi(f"buffer_load_dwordx4 v[{B+4*kb}:{B+4*kb+3}], v3, s[8:11], s3 offen offset:{kb*64}", f"x{kb}")
    for i in range(5, 13):
        a(f"v_mov_b32 v{i}, 0")
    for kb in range(18):
        a.wait_vm(f"x{kb}")
        for j in range(4):
            r = B + 4 * kb + j
            a(f"v_dot2_f32_bf16 v{5+j}, v{r}, v4, v{5+j}")
            a(f"v_dot2_f32_bf16 v{9+j}, v{r}, v{r}, v{9+j}")
    a("s_nop 3")
    a("v_add_f32 v5, v5, v6")
    a("v_add_f32 v7, v7, v8")
    a("v_add_f32 v9, v9, v10")
    a("v_add_f32 v11, v11, v12")
    a("v_add_f32 v5, v5, v7")
    a("v_add_f32 v9, v9, v11")
    for x in (15, 13):
        a(f"ds_bpermute_b32 v6, v{x}, v5")
        a(f"ds_bpermute_b32 v10, v{x}, v9")
        a("s_waitcnt lgkmcnt(0)")
        a("v_add_f32 v5, v5, v6")
        a("v_add_f32 v9, v9, v10")
    inv = 1.0 / 576.0
    import struct
    invb = struct.unpack("<I", struct.pack("<f", inv))[0]
    a(f"v_mul_f32 v5, {invb:#x}, v5")
    a(f"v_mul_f32 v9, {invb:#x}, v9")
    a("v_fma_f32 v9, -v5, v5, v9")
    a("v_max_f32 v9, 0, v9")
    bf16_round_f32(a, 5, 6)
    bf16_round_f32(a, 9, 6)
    eps = struct.unpack("<I", struct.pack("<f", 1e-5))[0]
    a(f"v_add_f32 v9, {eps:#x}, v9")
    bf16_round_f32(a, 9, 6)
    a("v_sqrt_f32 v9, v9")
    a("s_nop 0")
    bf16_round_f32(a, 9, 6)
    a("v_rcp_f32 v9, v9")
    a("s_nop 0")
    for kb in range(18):
        for j in range(4):
            r = B + 4 * kb + j
            a(f"v_lshlrev_b32 v6, 16, v{r}")
            a(f"v_and_b32 v7, 0xffff0000, v{r}")
            a("v_sub_f32 v6, v6, v5")
            a("v_sub_f32 v7, v7, v5")
            a("v_cvt_pk_bf16_f32 v8, v6, v7")
            a("v_lshlrev_b32 v6, 16, v8")
            a("v_and_b32 v7, 0xffff0000, v8")
            a("v_mul_f32 v6, v6, v9")
            a("v_mul_f32 v7, v7, v9")
            a(f"v_cvt_pk_bf16_f32 v{r}, v6, v7")
        if kb % 4 == 0:
            a(f"s_add_u32 s16, s3, {(kb//4)*4096}")
        a(f"buffer_store_dwordx4 v[{B+4*kb}:{B+4*kb+3}], v14, s[12:15], s16 offen offset:{(kb%4)*1024}")
    a.lab("L_ln_end")
    a("s_endpgm")
    return kd(name, 88, 24, 88)


def gen_ffn1(a):
    name = "ffn1_kernel"
    head(a, name)
    RT = 4
    D = 3
    RING = 6
    VB = 10
    VA = 19
    VR = 23
    VL16 = 27
    AF = 32
    WF = 80
    UACC = 112

    def accG(i, t):
        return f"a[{(i*9+t)*4}:{(i*9+t)*4+3}]"

    def accU(i, t):
        b = UACC + (i * 9 + t) * 4
        return f"v[{b}:{b+3}]"

    a("s_cmp_ge_u32 s2, 256")
    a("s_cbranch_scc1 L_f1_end")
    a("s_load_dwordx4 s[4:7], s[0:1], 32")
    a("s_load_dwordx2 s[26:27], s[0:1], 72")
    a("v_and_b32 v1, 63, v0")
    a("v_lshrrev_b32 v2, 6, v0")
    a("s_nop 0")
    a("v_readfirstlane_b32 s20, v2")
    a("s_and_b32 s23, s2, 7")
    a("s_lshr_b32 s24, s2, 3")
    a("s_and_b32 s21, s24, 3")
    a("s_lshl_b32 s23, s23, 2")
    a("s_add_u32 s21, s21, s23")
    a("s_lshr_b32 s22, s24, 2")
    a(f"v_lshlrev_b32 v{VL16}, 4, v1")
    a("s_lshl_b32 s23, s22, 4")
    a("s_lshl_b32 s24, s20, 2")
    a("s_add_u32 s28, s23, s24")
    a("s_mul_i32 s23, s28, 18432")
    for i in range(RT):
        a(f"s_add_u32 s24, s23, {i*18432}")
        a(f"v_add_u32 v{VA+i}, s24, v{VL16}")
    a("s_mul_i32 s23, s21, 288")
    for i in range(9):
        a(f"v_add_u32 v2, {64*i}, v1")
        a.vdiv(3, 2, 18, 64 * 9, 24)
        a("v_mul_u32_u24 v4, 18, v3")
        a("v_sub_u32 v4, v2, v4")
        a("v_and_b32 v5, 0x13, v3")
        a("v_and_b32 v6, 4, v3")
        a("v_lshl_or_b32 v5, v6, 1, v5")
        a("v_and_b32 v6, 8, v3")
        a("v_lshrrev_b32 v6, 1, v6")
        a("v_or_b32 v5, v5, v6")
        a("v_mul_u32_u24 v5, 9216, v5")
        a("v_lshl_add_u32 v5, v4, 4, v5")
        a(f"v_add_u32 v5, s23, v5")
        a(f"v_subrev_u32 v{VB+i}, {(i%4)*1024}, v5")
    a("v_lshrrev_b32 v2, 5, v1")
    a("v_lshlrev_b32 v2, 4, v2")
    a("v_bfe_u32 v3, v1, 4, 1")
    a("v_lshl_add_u32 v2, v3, 2, v2")
    a("v_bfe_u32 v3, v1, 2, 2")
    a("v_add_u32 v2, v2, v3")
    a("v_mul_u32_u24 v2, 288, v2")
    a("v_and_b32 v3, 3, v1")
    a("v_lshl_add_u32 v2, v3, 3, v2")
    for b in range(4):
        a(f"v_add_u32 v{VR+b}, {b*36864}, v2")
    a("s_lshr_b32 s23, s20, 1")
    a("s_and_b32 s24, s20, 1")
    a("s_mul_i32 s29, s23, 18432")
    a("s_mul_i32 s30, s24, 9216")
    a("s_add_u32 s29, s29, s30")
    a("s_mul_i32 s30, s24, 32*9216")
    a("s_waitcnt lgkmcnt(0)")
    a("s_cmp_eq_u32 s23, 0")
    a("s_cselect_b32 s4, s4, s6")
    a("s_cselect_b32 s5, s5, s7")
    a.srd(12, 4, 576 * 9216)
    a.srd(8, 26, XN_BYTES, XN_OFF)
    a.srd(16, 26, HO_BYTES, HO_OFF)

    def dma_ops(S):
        ops = []
        for i in range(9):
            def f(i=i):
                if i == 0:
                    a(f"s_add_u32 s31, s30, {S*64*9216}")
                if i % 4 == 0:
                    a(f"s_add_u32 m0, s29, {(S%4)*36864 + (i//4)*4096}")
                    a("s_nop 0")
                a.vmi(f"buffer_load_dwordx4 v{VB+i}, s[12:15], s31 offen offset:{(i%4)*1024} lds", f"dma{S}")
            ops.append(f)
        return ops

    def aload_ops(ks):
        ops = []
        for i in range(RT):
            def f(i=i):
                if i == 0:
                    a(f"s_mov_b32 s32, {ks*1024}")
                r = AF + (ks % 3) * 16 + i * 4
                a.vmi(f"buffer_load_dwordx4 v[{r}:{r+3}], v{VA+i}, s[8:11], s32 offen", f"a{ks}")
            ops.append(f)
        return ops

    for f in dma_ops(0): f()
    for f in aload_ops(0): f()
    for f in dma_ops(1): f()
    for f in aload_ops(1): f()
    pend = []
    total = 18 * 18

    def read_frag(m):
        ks = m // 18
        f = m % 18
        S = ks // 2
        if m % 36 == 0:
            a.wait_vm(f"dma{S}")
            a("s_barrier")
            if S + 2 < 9:
                pend.extend(dma_ops(S + 2))
        off = (ks % 2) * 9216 + (18432 if f >= 9 else 0) + (f % 9) * 32
        r = WF + (m % RING) * 4
        a.lgi(f"ds_read_b64_tr_b16 v[{r}:{r+1}], v{VR + S % 4} offset:{off}", f"w{m}")
        a.lgi(f"ds_read_b64_tr_b16 v[{r+2}:{r+3}], v{VR + S % 4} offset:{off + 2304}", f"w{m}")

    for m in range(D):
        read_frag(m)
    for n in range(total):
        ks = n // 18
        f = n % 18
        if n + D < total:
            read_frag(n + D)
        if f == 0:
            a.wait_vm(f"a{ks}")
            if ks + 2 < 18:
                pend[0:0] = aload_ops(ks + 2)
        a.wait_lg(f"w{n}")
        r = WF + (n % RING) * 4
        for i in range(RT):
            ar = AF + (ks % 3) * 16 + i * 4
            acc = accG(i, f) if f < 9 else accU(i, f - 9)
            c = "0" if ks == 0 else acc
            a(f"v_mfma_f32_16x16x32_bf16 {acc}, v[{r}:{r+3}], v[{ar}:{ar+3}], {c}")
        if pend:
            pend.pop(0)()
    assert not pend
    a("s_nop 7")
    a("s_nop 3")
    a("s_mul_i32 s23, s21, 9")
    a("s_lshr_b32 s24, s23, 1")
    a("s_mul_i32 s25, s28, 162")
    a("s_add_u32 s24, s24, s25")
    a("s_lshl_b32 s24, s24, 10")
    a("s_and_b32 s23, s21, 1")
    a("s_cmp_eq_u32 s23, 1")
    a("s_cbranch_scc1 L_f1_odd")

    def htile(i, t, dst):
        for r in range(4):
            a(f"v_accvgpr_read_b32 v{2+r}, a{(i*9+t)*4+r}")
        for r in range(4):
            a(f"v_max_f32 v{2+r}, 0, v{2+r}")
        for r in range(4):
            a(f"v_mul_f32 v{2+r}, v{2+r}, v{UACC+(i*9+t)*4+r}")
        a(f"v_cvt_pk_bf16_f32 v{dst}, v2, v3")
        a(f"v_cvt_pk_bf16_f32 v{dst+1}, v4, v5")

    for par in (0, 1):
        if par == 1:
            a.lab("L_f1_odd")
        cnt = 0
        for i in range(RT):
            a(f"s_add_u32 s25, s24, {i*162*1024}")
            t = 0
            blk = 0
            if par == 1:
                dst = AF + (cnt % 8) * 4; cnt += 1
                htile(i, 0, dst)
                a(f"buffer_store_dwordx2 v[{dst}:{dst+1}], v{VL16}, s[16:19], s25 offen offset:8")
                t = 1
                blk = 1
            while t + 1 < 9:
                dst = AF + (cnt % 8) * 4; cnt += 1
                htile(i, t, dst)
                htile(i, t + 1, dst + 2)
                if blk >= 4:
                    a(f"s_add_u32 s33, s25, 4096")
                    a(f"buffer_store_dwordx4 v[{dst}:{dst+3}], v{VL16}, s[16:19], s33 offen offset:{(blk-4)*1024}")
                else:
                    a(f"buffer_store_dwordx4 v[{dst}:{dst+3}], v{VL16}, s[16:19], s25 offen offset:{blk*1024}")
                t += 2
                blk += 1
            if par == 0:
                dst = AF + (cnt % 8) * 4; cnt += 1
                htile(i, 8, dst)
                a(f"s_add_u32 s33, s25, 4096")
                a(f"buffer_store_dwordx2 v[{dst}:{dst+1}], v{VL16}, s[16:19], s33 offen")
        if par == 0:
            a("s_branch L_f1_end")
    a.lab("L_f1_end")
    a("s_endpgm")
    return kd(name, 400, 40, 256)


def gen_qkv(a):
    name = "qkv_kernel"
    head(a, name)
    D = 3
    RING = 6
    VB = 10
    VA = 18
    VR = 23
    VW = 27
    VL16 = 31
    AF = 32
    WF = 92
    ACC = 116
    STG = 30720
    PITCH = 328
    SEC = 80 * PITCH

    def acc(i, j):
        b = ACC + (i * 4 + j) * 4
        return f"v[{b}:{b+3}]"

    a("s_cmp_ge_u32 s2, 256")
    a("s_cbranch_scc1 L_q_end")
    a("s_load_dwordx2 s[4:5], s[0:1], 8")
    a("s_load_dwordx2 s[26:27], s[0:1], 72")
    a("v_and_b32 v1, 63, v0")
    a("v_lshrrev_b32 v2, 6, v0")
    a("s_nop 0")
    a("v_readfirstlane_b32 s20, v2")
    a("s_and_b32 s21, s2, 7")
    a("s_lshr_b32 s22, s2, 3")
    a(f"v_lshlrev_b32 v{VL16}, 4, v1")
    a("s_lshl_b32 s28, s22, 2")
    for i in range(5):
        if i == 0:
            a("s_sub_u32 s23, s28, 1")
            a("s_max_i32 s23, s23, 0")
        else:
            a(f"s_add_u32 s23, s28, {i-1}")
        a("s_mul_i32 s23, s23, 18432")
        a(f"v_add_u32 v{VA+i}, s23, v{VL16}")
    a("s_mul_i32 s23, s20, 480")
    a("s_mul_i32 s25, s21, 144")
    for i in range(8):
        a(f"s_add_u32 s24, s23, {64*i}")
        a("v_add_u32 v2, s24, v1")
        a.vdiv(3, 2, 320, 2048, 24)
        a("v_mul_u32_u24 v4, 320, v3")
        a("v_sub_u32 v4, v2, v4")
        a.vdiv(5, 4, 10, 320, 24)
        a("v_mul_u32_u24 v6, 10, v5")
        a("v_sub_u32 v6, v4, v6")
        a.vdiv(7, 3, 3, 8, 24)
        a("v_mul_u32_u24 v8, 3, v7")
        a("v_sub_u32 v8, v3, v8")
        a("v_and_b32 v9, 0x13, v5")
        a("v_and_b32 v2, 4, v5")
        a("v_lshl_or_b32 v9, v2, 1, v9")
        a("v_and_b32 v2, 8, v5")
        a("v_lshrrev_b32 v2, 1, v2")
        a("v_or_b32 v9, v9, v2")
        a("v_lshl_add_u32 v9, v7, 5, v9")
        a("v_mul_u32_u24 v9, 3456, v9")
        a("v_mul_u32_u24 v8, 1152, v8")
        a("v_add_u32 v9, v9, v8")
        a("v_lshl_add_u32 v9, v6, 4, v9")
        a("v_add_u32 v9, s25, v9")
        a(f"v_subrev_u32 v{VB+i}, {(i%4)*1024}, v9")
    a("v_lshrrev_b32 v2, 5, v1")
    a("v_lshlrev_b32 v2, 4, v2")
    a("v_bfe_u32 v3, v1, 4, 1")
    a("v_lshl_add_u32 v2, v3, 2, v2")
    a("v_bfe_u32 v3, v1, 2, 2")
    a("v_add_u32 v2, v2, v3")
    a("v_mul_u32_u24 v2, 160, v2")
    a("v_and_b32 v3, 3, v1")
    a("v_lshl_add_u32 v2, v3, 3, v2")
    a("v_and_b32 v3, 15, v1")
    a(f"v_mul_u32_u24 v3, {PITCH}, v3")
    a("v_lshrrev_b32 v4, 4, v1")
    a("v_lshl_add_u32 v3, v4, 4, v3")
    for j in range(4):
        a(f"s_lshl_b32 s23, s20, 2")
        a(f"s_add_u32 s23, s23, {j}")
        a("s_mul_i32 s24, s23, 13")
        a("s_lshr_b32 s24, s24, 6")
        a("s_mul_i32 s25, s24, 5")
        a("s_sub_u32 s25, s23, s25")
        a("s_min_u32 s29, s24, 2")
        a("s_mul_i32 s29, s29, 5120")
        a("s_lshl_b32 s30, s25, 5")
        a("s_add_u32 s29, s29, s30")
        a(f"v_add_u32 v{VR+j}, s29, v2")
        a(f"s_mul_i32 s29, s24, {SEC}")
        a("s_lshl_b32 s30, s25, 6")
        a("s_add_u32 s29, s29, s30")
        a(f"v_add_u32 v{VW+j}, s29, v3")
    a("s_mul_i32 s29, s20, 7680")
    a("s_waitcnt lgkmcnt(0)")
    a.srd(12, 4, 576 * 3456)
    a.srd(8, 26, XN_BYTES, XN_OFF)
    a.srd(16, 26, HO_BYTES, HO_OFF)

    def dma_ops(S):
        ops = []
        for i in range(8):
            def f(i=i):
                if i == 0:
                    a(f"s_mov_b32 s31, {S*64*3456}")
                if i % 4 == 0:
                    a(f"s_add_u32 m0, s29, {(S%4)*STG + (i//4)*4096}")
                    a("s_nop 0")
                if i == 7:
                    a("s_mov_b32 exec_hi, 0")
                a.vmi(f"buffer_load_dwordx4 v{VB+i}, s[12:15], s31 offen offset:{(i%4)*1024} lds", f"dma{S}")
                if i == 7:
                    a("s_mov_b32 exec_hi, -1")
            ops.append(f)
        return ops

    def aload_ops(ks):
        ops = []
        for i in range(5):
            def f(i=i):
                if i == 0:
                    a(f"s_mov_b32 s32, {ks*1024}")
                r = AF + (ks % 3) * 20 + i * 4
                a.vmi(f"buffer_load_dwordx4 v[{r}:{r+3}], v{VA+i}, s[8:11], s32 offen", f"a{ks}")
            ops.append(f)
        return ops

    for f in dma_ops(0): f()
    for f in aload_ops(0): f()
    for f in dma_ops(1): f()
    for f in aload_ops(1): f()
    pend = []
    total = 18 * 4

    def read_frag(m):
        ks = m // 4
        j = m % 4
        S = ks // 2
        if m % 8 == 0:
            a.wait_vm(f"dma{S}")
            a("s_barrier")
            if S + 2 < 9:
                pend.extend(dma_ops(S + 2))
        off = (S % 4) * STG + (ks % 2) * 15360
        r = WF + (m % RING) * 4
        if off + 1280 <= 65535:
            a.lgi(f"ds_read_b64_tr_b16 v[{r}:{r+1}], v{VR+j} offset:{off}", f"w{m}")
            a.lgi(f"ds_read_b64_tr_b16 v[{r+2}:{r+3}], v{VR+j} offset:{off + 1280}", f"w{m}")
        else:
            a(f"v_add_u32 v9, {off}, v{VR+j}")
            a.lgi(f"ds_read_b64_tr_b16 v[{r}:{r+1}], v9", f"w{m}")
            a.lgi(f"ds_read_b64_tr_b16 v[{r+2}:{r+3}], v9 offset:1280", f"w{m}")

    for m in range(D):
        read_frag(m)
    for n in range(total):
        ks = n // 4
        j = n % 4
        if n + D < total:
            read_frag(n + D)
        if j == 0:
            a.wait_vm(f"a{ks}")
            if ks + 2 < 18:
                pend[0:0] = aload_ops(ks + 2)
        a.wait_lg(f"w{n}")
        r = WF + (n % RING) * 4
        for i in range(5):
            ar = AF + (ks % 3) * 20 + i * 4
            c = "0" if ks == 0 else acc(i, j)
            a(f"v_mfma_f32_16x16x32_bf16 {acc(i,j)}, v[{r}:{r+3}], v[{ar}:{ar+3}], {c}")
            if pend and i in (1, 3):
                pend.pop(0)()
        if pend:
            pend.pop(0)()
    while pend:
        pend.pop(0)()
    a("s_waitcnt vmcnt(0) lgkmcnt(0)")
    a.reset()
    a("s_nop 7")
    a("s_barrier")
    for i in range(5):
        for j in range(4):
            b = ACC + (i * 4 + j) * 4
            a(f"v_cvt_pk_bf16_f32 v2, v{b}, v{b+1}")
            a(f"v_cvt_pk_bf16_f32 v3, v{b+2}, v{b+3}")
            a(f"v_lshlrev_b32 v{b}, 16, v2")
            a(f"v_and_b32 v{b+1}, 0xffff0000, v2")
            a(f"v_lshlrev_b32 v{b+2}, 16, v3")
            a(f"v_and_b32 v{b+3}, 0xffff0000, v3")
            a(f"ds_write_b64 v{VW+j}, v[{b}:{b+1}] offset:{i*16*PITCH}")
            a(f"ds_write_b64 v{VW+j}, v[{b+2}:{b+3}] offset:{i*16*PITCH+8}")
    a("s_waitcnt lgkmcnt(0)")
    a("s_barrier")
    a(f"v_mul_u32_u24 v2, {PITCH}, v1")
    a("s_mul_i32 s23, s20, 72")
    a(f"s_add_u32 s23, s23, {16*PITCH}")
    a("v_add_u32 v2, s23, v2")
    Q = 32
    KV = 52
    LG = 90
    O = 100
    for p in range(9):
        a.lgi(f"ds_read_b64 v[{Q+2*p}:{Q+2*p+1}], v2 offset:{8*p}", "q")

    def rd(w, sec, buf, tag):
        off = sec * SEC - 2 * w * PITCH
        for p in range(9):
            a.lgi(f"ds_read_b64 v[{KV+buf*18+2*p}:{KV+buf*18+2*p+1}], v2 offset:{off+8*p}", tag)

    rd(0, 1, 0, "k0")
    for w in range(8):
        if w + 1 < 8:
            a.wait_lg(f"k{w}")
            rd(w + 1, 1, (w + 1) % 2, f"k{w+1}")
        else:
            a.wait_lg(f"k{w}")
        kb = KV + (w % 2) * 18
        a(f"v_mul_f32 v{LG+w}, v{Q}, v{kb}")
        for d in range(1, 18):
            a(f"v_fmac_f32 v{LG+w}, v{Q+d}, v{kb+d}")
    rd(0, 2, 0, "v0")
    import struct
    sc = struct.unpack("<I", struct.pack("<f", 18 ** -0.5))[0]
    for w in range(8):
        bf16_round_f32(a, LG + w, 3)
        a(f"v_mul_f32 v{LG+w}, {sc:#x}, v{LG+w}")
        bf16_round_f32(a, LG + w, 3)
    a("s_lshl_b32 s23, s22, 6")
    a("v_add_u32 v4, s23, v1")
    neg = struct.unpack("<I", struct.pack("<f", -1e9))[0]
    a(f"v_mov_b32 v5, {neg:#x}")
    for w in range(1, 8):
        a(f"v_cmp_le_u32 vcc, {2*w}, v4")
        a("s_nop 1")
        a(f"v_cndmask_b32 v{LG+w}, v5, v{LG+w}, vcc")
    a(f"v_max_f32 v6, v{LG}, v{LG+1}")
    for w in range(2, 8):
        a(f"v_max_f32 v6, v6, v{LG+w}")
    l2e = struct.unpack("<I", struct.pack("<f", 1.4426950408889634))[0]
    for w in range(8):
        a(f"v_sub_f32 v{LG+w}, v{LG+w}, v6")
        a(f"v_mul_f32 v{LG+w}, {l2e:#x}, v{LG+w}")
        a(f"v_exp_f32 v{LG+w}, v{LG+w}")
    a("s_nop 0")
    a(f"v_add_f32 v7, v{LG}, v{LG+1}")
    for w in range(2, 8):
        a(f"v_add_f32 v7, v7, v{LG+w}")
    a("v_rcp_f32 v7, v7")
    a("s_nop 0")
    for w in range(8):
        a(f"v_mul_f32 v{LG+w}, v{LG+w}, v7")
        bf16_round_f32(a, LG + w, 3)
    for w in range(8):
        a.wait_lg(f"v{w}")
        if w + 1 < 8:
            rd(w + 1, 2, (w + 1) % 2, f"v{w+1}")
        vb = KV + (w % 2) * 18
        for d in range(18):
            if w == 0:
                a(f"v_mul_f32 v{O+d}, v{LG}, v{vb+d}")
            else:
                a(f"v_fmac_f32 v{O+d}, v{LG+w}, v{vb+d}")
    a("v_lshrrev_b32 v2, 4, v1")
    a("v_add_u32 v2, s28, v2")
    a("s_mov_b32 s23, 162*1024")
    a("v_mul_lo_u32 v2, v2, s23")
    a("v_and_b32 v3, 15, v1")
    a("v_lshl_add_u32 v2, v3, 4, v2")
    a("s_mul_i32 s23, s21, 72")
    a("s_mul_i32 s24, s20, 18")
    a("s_add_u32 s23, s23, s24")
    for p in range(9):
        a(f"s_add_u32 s24, s23, {2*p}")
        a("s_lshr_b32 s25, s24, 5")
        a("s_add_u32 s25, s25, 144")
        a("s_lshl_b32 s25, s25, 10")
        a("s_bfe_u32 s29, s24, 0x20002")
        a("s_lshl_b32 s29, s29, 8")
        a("s_add_u32 s25, s25, s29")
        a("s_bfe_u32 s29, s24, 0x10004")
        a("s_lshl_b32 s29, s29, 3")
        a("s_add_u32 s25, s25, s29")
        a("s_and_b32 s29, s24, 2")
        a("s_lshl_b32 s29, s29, 1")
        a("s_add_u32 s25, s25, s29")
        a(f"v_cvt_pk_bf16_f32 v{Q+p}, v{O+2*p}, v{O+2*p+1}")
        a(f"buffer_store_dword v{Q+p}, v2, s[16:19], s25 offen")
    a.lab("L_q_end")
    a("s_endpgm")
    return kd(name, 200, 40, 200)


def gen_gemm2(a):
    name = "gemm2_kernel"
    head(a, name)
    NST = 21
    NRING = 8
    PD = 6
    PA = 6
    NA = PA + 1
    D = 3
    RING = 6
    STG = 18432
    VB = 10
    VA = 16
    VR = 18
    VL16 = 22
    AF = 24
    WF = AF + NA * 8
    ACC = WF + RING * 4

    def acc(i, t):
        b = ACC + (i * 9 + t) * 4
        return f"v[{b}:{b+3}]"

    a("s_cmp_ge_u32 s2, 256")
    a("s_cbranch_scc1 L_g2_end")
    a("s_load_dwordx2 s[4:5], s[0:1], 48")
    a("s_load_dwordx2 s[6:7], s[0:1], 16")
    a("s_load_dwordx2 s[26:27], s[0:1], 72")
    a("v_and_b32 v1, 63, v0")
    a("v_lshrrev_b32 v2, 6, v0")
    a("s_nop 0")
    a("v_readfirstlane_b32 s20, v2")
    a("s_and_b32 s23, s2, 7")
    a("s_lshr_b32 s24, s2, 3")
    a("s_lshr_b32 s21, s23, 1")
    a("s_and_b32 s23, s23, 1")
    a("s_lshl_b32 s23, s23, 3")
    a("s_lshr_b32 s22, s24, 2")
    a("s_add_u32 s22, s22, s23")
    a("s_and_b32 s34, s24, 3")
    a(f"v_lshlrev_b32 v{VL16}, 4, v1")
    a("s_lshl_b32 s23, s22, 3")
    a("s_lshl_b32 s24, s20, 1")
    a("s_add_u32 s28, s23, s24")
    a("s_mul_i32 s23, s28, 162*1024")
    for i in range(2):
        a(f"s_add_u32 s24, s23, {i*162*1024}")
        a(f"v_add_u32 v{VA+i}, s24, v{VL16}")
    a("s_mul_i32 s23, s20, 288")
    a("s_mul_i32 s25, s34, 288")
    for i in range(5):
        a(f"s_add_u32 s24, s23, {64*i}")
        a("v_add_u32 v2, s24, v1")
        a.vdiv(3, 2, 18, 1152 + 64, 24)
        a("v_mul_u32_u24 v4, 18, v3")
        a("v_sub_u32 v4, v2, v4")
        a("v_mul_u32_u24 v5, 1152, v3")
        a("v_lshl_add_u32 v5, v4, 4, v5")
        a("v_add_u32 v5, s25, v5")
        a(f"v_subrev_u32 v{VB+i}, {(i%4)*1024}, v5")
    a("v_lshrrev_b32 v2, 4, v1")
    a("v_lshlrev_b32 v2, 2, v2")
    a("v_bfe_u32 v3, v1, 2, 2")
    a("v_add_u32 v2, v2, v3")
    a("v_mul_u32_u24 v2, 288, v2")
    a("v_and_b32 v3, 3, v1")
    a("v_lshl_add_u32 v2, v3, 3, v2")
    for b in range(3):
        a(f"v_add_u32 v{VR+b}, {b*3*STG}, v2")
    a("s_mul_i32 s29, s20, 4608")
    a(f"s_mul_i32 s35, s21, {NST}")
    a("s_waitcnt lgkmcnt(0)")
    a("s_and_b32 s5, s5, 0xffff")
    a("s_and_b32 s7, s7, 0xffff")
    a("s_mov_b32 s15, 0x00020000")
    a(f"s_mov_b32 s36, {4608*1152}")
    a(f"s_mov_b32 s37, {576*1152}")
    a.srd(8, 26, HO_BYTES, HO_OFF)
    a.srd(16, 26, PART_BYTES, PART_OFF)

    def dma_ops(S):
        ops = []
        for i in range(5):
            def f(i=i):
                if i == 0:
                    a(f"s_add_u32 s30, s35, {S}")
                    a("s_sub_u32 s33, s30, 72")
                    a("s_cmp_lt_u32 s30, 72")
                    a("s_cselect_b32 s12, s4, s6")
                    a("s_cselect_b32 s13, s5, s7")
                    a(f"s_cselect_b32 s14, s36, s37")
                    a("s_cselect_b32 s30, s30, s33")
                    a(f"s_mul_i32 s31, s30, {64*1152}")
                if i % 4 == 0:
                    a(f"s_add_u32 m0, s29, {(S%NRING)*STG + (i//4)*4096}")
                    a("s_nop 0")
                if i == 4:
                    a("s_mov_b32 exec_hi, 0")
                a.vmi(f"buffer_load_dwordx4 v{VB+i}, s[12:15], s31 offen offset:{(i%4)*1024} lds", f"dma{S}")
                if i == 4:
                    a("s_mov_b32 exec_hi, -1")
            ops.append(f)
        return ops

    def aload_ops(ks):
        ops = []
        for i in range(2):
            def f(i=i):
                if i == 0:
                    a(f"s_lshl_b32 s32, s35, 1")
                    a(f"s_add_u32 s32, s32, {ks}")
                    a("s_cmp_lt_u32 s32, 162")
                    a("s_cselect_b32 s32, s32, 0x100000")
                    a("s_lshl_b32 s32, s32, 10")
                r = AF + (ks % NA) * 8 + i * 4
                a.vmi(f"buffer_load_dwordx4 v[{r}:{r+3}], v{VA+i}, s[8:11], s32 offen", f"a{ks}")
            ops.append(f)
        return ops

    NKS = 2 * NST
    for S in range(PD):
        for f in dma_ops(S): f()
        if 2 * S < PA:
            for f in aload_ops(2 * S): f()
        if 2 * S + 1 < PA:
            for f in aload_ops(2 * S + 1): f()
    pend = []
    total = NKS * 9

    def read_frag(m):
        ks = m // 9
        t = m % 9
        S = ks // 2
        if m % 18 == 0:
            a.wait_vm(f"dma{S}")
            a("s_barrier")
            if S + PD < NST:
                pend.extend(dma_ops(S + PD))
        rb = S % NRING
        off = (rb % 3) * STG + (ks % 2) * 9216 + t * 32
        r = WF + (m % RING) * 4
        a.lgi(f"ds_read_b64_tr_b16 v[{r}:{r+1}], v{VR + rb // 3} offset:{off}", f"w{m}")
        a.lgi(f"ds_read_b64_tr_b16 v[{r+2}:{r+3}], v{VR + rb // 3} offset:{off + 16*288}", f"w{m}")

    for m in range(D):
        read_frag(m)
    for n in range(total):
        ks = n // 9
        t = n % 9
        if n + D < total:
            read_frag(n + D)
        if t == 0:
            a.wait_vm(f"a{ks}")
            if ks + PA < NKS:
                pend[0:0] = aload_ops(ks + PA)
        a.wait_lg(f"w{n}")
        r = WF + (n % RING) * 4
        for i in range(2):
            ar = AF + (ks % NA) * 8 + i * 4
            c = "0" if ks == 0 else acc(i, t)
            a(f"v_mfma_f32_16x16x32_bf16 {acc(i,t)}, v[{r}:{r+3}], v[{ar}:{ar+3}], {c}")
        if pend:
            pend.pop(0)()
    assert not pend
    a("s_nop 7")
    a("s_nop 3")
    a("s_lshl_b32 s23, s21, 7")
    a("s_add_u32 s23, s23, s28")
    a("s_mul_i32 s23, s23, 36")
    a("s_mul_i32 s24, s34, 9")
    a("s_add_u32 s23, s23, s24")
    a("s_lshl_b32 s23, s23, 10")
    for i in range(2):
        for t in range(9):
            o = (i * 36 + t) * 1024
            if o % 4096 == 0 or t == 0:
                a(f"s_add_u32 s24, s23, {o - o % 4096}")
            b = ACC + (i * 9 + t) * 4
            a(f"buffer_store_dwordx4 v[{b}:{b+3}], v{VL16}, s[16:19], s24 offen offset:{o % 4096}")
    a.lab("L_g2_end")
    a("s_endpgm")
    nv = ACC + 72
    return kd(name, nv, 40, (nv + 3) // 4 * 4)


def gen_reduce(a):
    name = "reduce_kernel"
    head(a, name)
    a("s_cmp_ge_u32 s2, 1152")
    a("s_cbranch_scc1 L_r_end")
    a("s_load_dwordx2 s[4:5], s[0:1], 0")
    a("s_load_dwordx2 s[6:7], s[0:1], 56")
    a("s_load_dwordx2 s[26:27], s[0:1], 72")
    a("v_and_b32 v1, 63, v0")
    a("v_lshrrev_b32 v2, 6, v0")
    a("s_nop 0")
    a("v_readfirstlane_b32 s20, v2")
    a("s_lshl_b32 s21, s2, 2")
    a("s_add_u32 s21, s21, s20")
    a("s_lshl_b32 s22, s21, 10")
    a("s_mul_i32 s23, s21, 29128")
    a("s_lshr_b32 s23, s23, 20")
    a("s_mul_i32 s24, s23, 36")
    a("s_sub_u32 s24, s21, s24")
    assert all((u * 29128) >> 20 == u // 36 for u in range(4608))
    a("v_and_b32 v2, 15, v1")
    a("v_mul_u32_u24 v2, 1152, v2")
    a("v_lshrrev_b32 v3, 4, v1")
    a("v_lshl_add_u32 v2, v3, 3, v2")
    a("s_mul_i32 s25, s23, 18432")
    a("s_lshl_b32 s28, s24, 5")
    a("s_add_u32 s25, s25, s28")
    a("v_lshlrev_b32 v3, 4, v1")
    a("s_waitcnt lgkmcnt(0)")
    a.srd(8, 4, 2048 * 1152)
    a.srd(12, 6, 2048 * 1152)
    a.srd(16, 26, PART_BYTES, PART_OFF)
    for s in range(4):
        a(f"s_add_u32 s28, s22, {s*2048*576*4}")
        a(f"buffer_load_dwordx4 v[{8+4*s}:{11+4*s}], v3, s[16:19], s28 offen")
    a("buffer_load_dwordx2 v[4:5], v2, s[8:11], s25 offen")
    a("s_waitcnt vmcnt(0)")
    for r in range(4):
        a(f"v_add_f32 v{8+r}, v{8+r}, v{12+r}")
        a(f"v_add_f32 v{16+r}, v{16+r}, v{20+r}")
    for r in range(4):
        a(f"v_add_f32 v{8+r}, v{8+r}, v{16+r}")
    a("v_lshlrev_b32 v6, 16, v4")
    a("v_and_b32 v7, 0xffff0000, v4")
    a("v_add_f32 v8, v8, v6")
    a("v_add_f32 v9, v9, v7")
    a("v_lshlrev_b32 v6, 16, v5")
    a("v_and_b32 v7, 0xffff0000, v5")
    a("v_add_f32 v10, v10, v6")
    a("v_add_f32 v11, v11, v7")
    a("v_cvt_pk_bf16_f32 v4, v8, v9")
    a("v_cvt_pk_bf16_f32 v5, v10, v11")
    a("buffer_store_dwordx2 v[4:5], v2, s[12:15], s25 offen")
    a.lab("L_r_end")
    a("s_endpgm")
    return kd(name, 24, 32, 24)


def main():
    a = A()
    hdr = open(f"cdna_kernels/{NAME}.s.ref").read().split("\n")
    for l in hdr:
        if l.startswith(";") and "@launch" not in l and "Override" not in l and "grid=ceil" not in l:
            a.raw(l)
    a.raw("; @launch kernel=ln_kernel grid=(128,1,1) block=(64,1,1) lds=0")
    a.raw("; @launch kernel=qkv_kernel grid=(256,1,1) block=(256,1,1) lds=122880")
    a.raw("; @launch kernel=ffn1_kernel grid=(256,1,1) block=(256,1,1) lds=147456")
    a.raw("; @launch kernel=gemm2_kernel grid=(256,1,1) block=(256,1,1) lds=147456")
    a.raw("; @launch kernel=reduce_kernel grid=(1152,1,1) block=(256,1,1) lds=0")
    a.raw('.amdgcn_target "amdgcn-amd-amdhsa--gfx950"')
    a.raw(".text")
    for g in (gen_ln, gen_qkv, gen_ffn1, gen_gemm2, gen_reduce):
        k = g(a)
        a.raw(k)
    out = sys.argv[1] if len(sys.argv) > 1 else f"cdna_kernels/{NAME}.s"
    open(out, "w").write("\n".join(a.L) + "\n")


main()
```

```python
import sys

NAME = "parallel_sum__sliding_local_dilated__glu_gated_reglu__prompt"
XN_OFF = 0
HO_OFF = 4 << 20
PART_OFF = 32 << 20
XN_BYTES = 128 * 18 * 1024
HO_BYTES = 128 * 162 * 1024
PART_BYTES = 4 * 2048 * 576 * 4


import os
EXP = os.environ.get("EXP", "")


class A:
    def __init__(self):
        self.L = []
        self.vm = []
        self.lg = []

    def __call__(self, s):
        if "nomfma" in EXP and s.startswith("v_mfma"):
            return
        if "nodma" in EXP and s.endswith(" lds"):
            s = "s_nop 0"
        if "noaload" in EXP and s.startswith("buffer_load_dwordx4 v[") :
            s = "s_nop 0"
        if "nods" in EXP and s.startswith("ds_read_b64_tr"):
            return
        if "nostore" in EXP and s.startswith("buffer_store"):
            return
        if "empty" in EXP and s.startswith("s_cmp_ge_u32 s2,"):
            s = "s_cmp_ge_u32 s2, 0"
        self.L.append("    " + s)

    def lab(self, s):
        self.L.append(s + ":")

    def c(self, s):
        self.L.append("    ; " + s)

    def raw(self, s):
        self.L.append(s)

    def reset(self):
        self.vm = []
        self.lg = []

    def vmi(self, instr, tag):
        self(instr)
        self.vm.append(tag)

    def lgi(self, instr, tag):
        self(instr)
        self.lg.append(tag)

    def wait_vm(self, tag):
        idx = [i for i, t in enumerate(self.vm) if t == tag]
        if not idx:
            return
        i = idx[-1]
        n = len(self.vm) - (i + 1)
        assert n <= 63, n
        self(f"s_waitcnt vmcnt({n})")
        self.vm = self.vm[i + 1:]

    def wait_lg(self, tag):
        idx = [i for i, t in enumerate(self.lg) if t == tag]
        if not idx:
            return
        i = idx[-1]
        n = len(self.lg) - (i + 1)
        assert n <= 15, n
        self(f"s_waitcnt lgkmcnt({n})")
        self.lg = self.lg[i + 1:]

    def stamp(self, i):
        if "stamp" not in EXP:
            return
        self(f"s_memtime s[{64+2*i}:{65+2*i}]")
        if i == 0:
            self("s_memrealtime s[96:97]")

    def apples(self):
        pass

    def stamp_out(self, n, wg, base=0):
        if "stamp" not in EXP:
            return
        lab = f"L_st_{len(self.L)}"
        self(f"s_memrealtime s[{64+2*n}:{65+2*n}]")
        self("s_waitcnt lgkmcnt(0)")
        self(f"s_sub_u32 s{64+2*n}, s{64+2*n}, s96")
        self(f"s_add_u32 s{64+2*n}, s{64+2*n}, s64")
        n += 1
        self(f"s_cmp_lg_u32 s2, {wg}")
        self(f"s_cbranch_scc1 {lab}")
        self("s_load_dwordx2 s[60:61], s[0:1], 72")
        self("s_waitcnt lgkmcnt(0)")
        self(f"s_add_u32 s56, s60, {(200<<20) + self.kidx*256}")
        self("s_addc_u32 s57, s61, 0")
        self("s_and_b32 s57, s57, 0xffff")
        self("s_mov_b32 s58, 256")
        self("s_mov_b32 s59, 0x00020000")
        self("v_bfe_u32 v2, v0, 6, 1")
        self("v_lshlrev_b32 v2, 6, v2")
        self(f"v_add_u32 v2, {base}, v2")
        self("v_and_b32 v3, 63, v0")
        self("v_cmp_eq_u32 vcc, 0, v3")
        self("s_and_saveexec_b64 s[62:63], vcc")
        for i in range(n):
            self(f"s_sub_u32 s{64+2*i+1}, s{64+2*i}, s64") if i else None
        for i in range(n):
            self(f"v_mov_b32 v3, s{64+2*i+1 if i else 64}")
            self(f"buffer_store_dword v3, v2, s[56:59], 0 offen offset:{4*i}")
            self("s_nop 1")
        self("s_mov_b64 exec, s[62:63]")
        self.lab(lab)

    def srd(self, s, plo, nbytes, add=0):
        if add:
            self(f"s_add_u32 s{s}, s{plo}, {add}")
            self(f"s_addc_u32 s{s+1}, s{plo+1}, 0")
            self(f"s_and_b32 s{s+1}, s{s+1}, 0xffff")
        else:
            self(f"s_mov_b32 s{s}, s{plo}")
            self(f"s_and_b32 s{s+1}, s{plo+1}, 0xffff")
        self(f"s_mov_b32 s{s+2}, {nbytes}")
        self(f"s_mov_b32 s{s+3}, 0x00020000")

    def vdiv(self, dst, src, d, maxv, tmp_s):
        for sh in range(8, 24):
            m = -(-(1 << sh) // d)
            if m >= (1 << 24) or maxv * m >= (1 << 32):
                continue
            if all((x * m) >> sh == x // d for x in range(maxv)):
                break
        else:
            raise Exception("no magic")
        self(f"s_mov_b32 s{tmp_s}, {m}")
        self(f"v_mul_u32_u24 v{dst}, s{tmp_s}, v{src}")
        self(f"v_lshrrev_b32 v{dst}, {sh}, v{dst}")


def kd(name, vgpr, sgpr, accum):
    if "stamp" in EXP:
        sgpr = 100
    return f""".section .rodata,"a"
.p2align 6
.amdhsa_kernel {name}
  .amdhsa_next_free_vgpr {vgpr}
  .amdhsa_next_free_sgpr {sgpr}
  .amdhsa_accum_offset {accum}
  .amdhsa_group_segment_fixed_size 0
  .amdhsa_kernarg_size 80
  .amdhsa_user_sgpr_count 2
  .amdhsa_user_sgpr_kernarg_segment_ptr 1
  .amdhsa_system_sgpr_workgroup_id_x 1
.end_amdhsa_kernel
.text
"""


def head(a, name):
    a.raw(f".globl {name}")
    a.raw(".p2align 8")
    a.raw(f".type {name},@function")
    a.lab(name)
    a.reset()
    a.kidx = getattr(a, "kidx", -1) + 1


def bf16_round_f32(a, v, tmp):
    a(f"v_cvt_pk_bf16_f32 v{tmp}, v{v}, v{v}")
    a(f"v_lshlrev_b32 v{v}, 16, v{tmp}")


def gen_ln(a):
    name = "ln_kernel"
    head(a, name)
    a("s_cmp_ge_u32 s2, 128" if "nopf" in EXP else "s_cmp_ge_u32 s2, 384")
    a("s_cbranch_scc1 L_ln_end")
    a("s_cmp_ge_u32 s2, 128")
    a("s_cbranch_scc1 L_ln_pf")
    a("s_load_dwordx2 s[4:5], s[0:1], 0")
    a("s_load_dwordx2 s[6:7], s[0:1], 72")
    a("v_and_b32 v1, 15, v0")
    a("v_lshrrev_b32 v2, 4, v0")
    a("v_mul_u32_u24 v3, 1152, v1")
    a("v_lshl_add_u32 v3, v2, 4, v3")
    a("s_mul_i32 s3, s2, 18432")
    a("v_mov_b32 v4, 0x3f803f80")
    a("v_lshlrev_b32 v14, 4, v0")
    a("v_xor_b32 v15, 16, v0")
    a("v_lshlrev_b32 v15, 2, v15")
    a("v_xor_b32 v13, 32, v0")
    a("v_lshlrev_b32 v13, 2, v13")
    a("s_waitcnt lgkmcnt(0)")
    a.srd(8, 4, 2048 * 1152)
    a.srd(12, 6, XN_BYTES, XN_OFF)
    B = 16
    for kb in range(18):
        a.vmi(f"buffer_load_dwordx4 v[{B+4*kb}:{B+4*kb+3}], v3, s[8:11], s3 offen offset:{kb*64}", f"x{kb}")
    for i in range(5, 13):
        a(f"v_mov_b32 v{i}, 0")
    for kb in range(18):
        a.wait_vm(f"x{kb}")
        for j in range(4):
            r = B + 4 * kb + j
            a(f"v_dot2_f32_bf16 v{5+j}, v{r}, v4, v{5+j}")
            a(f"v_dot2_f32_bf16 v{9+j}, v{r}, v{r}, v{9+j}")
    a("s_nop 3")
    a("v_add_f32 v5, v5, v6")
    a("v_add_f32 v7, v7, v8")
    a("v_add_f32 v9, v9, v10")
    a("v_add_f32 v11, v11, v12")
    a("v_add_f32 v5, v5, v7")
    a("v_add_f32 v9, v9, v11")
    for x in (15, 13):
        a(f"ds_bpermute_b32 v6, v{x}, v5")
        a(f"ds_bpermute_b32 v10, v{x}, v9")
        a("s_waitcnt lgkmcnt(0)")
        a("v_add_f32 v5, v5, v6")
        a("v_add_f32 v9, v9, v10")
    inv = 1.0 / 576.0
    import struct
    invb = struct.unpack("<I", struct.pack("<f", inv))[0]
    a(f"v_mul_f32 v5, {invb:#x}, v5")
    a(f"v_mul_f32 v9, {invb:#x}, v9")
    a("v_fma_f32 v9, -v5, v5, v9")
    a("v_max_f32 v9, 0, v9")
    bf16_round_f32(a, 5, 6)
    bf16_round_f32(a, 9, 6)
    eps = struct.unpack("<I", struct.pack("<f", 1e-5))[0]
    a(f"v_add_f32 v9, {eps:#x}, v9")
    bf16_round_f32(a, 9, 6)
    a("v_sqrt_f32 v9, v9")
    a("s_nop 0")
    bf16_round_f32(a, 9, 6)
    a("v_rcp_f32 v9, v9")
    a("s_nop 0")
    for kb in range(18):
        for j in range(4):
            r = B + 4 * kb + j
            a(f"v_lshlrev_b32 v6, 16, v{r}")
            a(f"v_and_b32 v7, 0xffff0000, v{r}")
            a("v_sub_f32 v6, v6, v5")
            a("v_sub_f32 v7, v7, v5")
            a("v_cvt_pk_bf16_f32 v8, v6, v7")
            a("v_lshlrev_b32 v6, 16, v8")
            a("v_and_b32 v7, 0xffff0000, v8")
            a("v_mul_f32 v6, v6, v9")
            a("v_mul_f32 v7, v7, v9")
            a(f"v_cvt_pk_bf16_f32 v{r}, v6, v7")
        if kb % 4 == 0:
            a(f"s_add_u32 s16, s3, {(kb//4)*4096}")
        a(f"buffer_store_dwordx4 v[{B+4*kb}:{B+4*kb+3}], v14, s[12:15], s16 offen offset:{(kb%4)*1024}")
    a("s_branch L_ln_end")
    a.lab("L_ln_pf")
    a("s_load_dwordx4 s[4:7], s[0:1], 8")
    a("s_load_dwordx4 s[24:27], s[0:1], 32")
    a("s_load_dwordx2 s[28:29], s[0:1], 48")
    a("s_sub_u32 s3, s2, 128")
    a("s_and_b32 s20, s3, 7")
    a("s_lshr_b32 s21, s3, 3")
    a.vdiv(2, 0, 18, 64, 22)
    a("v_mul_u32_u24 v3, 18, v2")
    a("v_sub_u32 v3, v0, v3")
    a("v_cmp_gt_u32 vcc, 54, v0")
    a("s_nop 1")
    a("v_cndmask_b32 v2, 0, v2, vcc")
    a("v_cndmask_b32 v3, 0, v3, vcc")
    a("v_mul_u32_u24 v4, 9216, v2")
    a("v_lshl_add_u32 v4, v3, 6, v4")
    a("s_mul_i32 s22, s20, 1152")
    a("v_add_u32 v4, s22, v4")
    a.vdiv(6, 3, 6, 64, 22)
    a("v_mul_u32_u24 v7, 6, v6")
    a("v_sub_u32 v7, v3, v7")
    a("v_mul_u32_u24 v5, 3456, v2")
    a("v_mul_u32_u24 v6, 1152, v6")
    a("v_add_u32 v5, v5, v6")
    a("v_lshl_add_u32 v5, v7, 6, v5")
    a("s_lshr_b32 s22, s20, 1")
    a("s_mul_i32 s22, s22, 288")
    a("v_add_u32 v5, s22, v5")
    a("v_lshlrev_b32 v6, 6, v0")
    a("s_waitcnt lgkmcnt(0)")
    a.srd(8, 24, 576 * 9216)
    a.srd(12, 26, 576 * 9216)
    a.srd(16, 4, 576 * 3456)
    a.srd(32, 28, 4608 * 1152)
    a.srd(36, 6, 576 * 1152)
    a("s_mul_i32 s22, s21, 18*9216")
    for i in range(6):
        a(f"s_add_u32 s23, s22, {i*3*9216}")
        a("buffer_load_dword v10, v4, s[8:11], s23 offen")
        a("buffer_load_dword v11, v4, s[12:15], s23 offen")
    a("s_mul_i32 s22, s21, 18*3456")
    for i in range(6):
        a(f"s_add_u32 s23, s22, {i*3*3456}")
        a("buffer_load_dword v12, v5, s[16:19], s23 offen")
    a.lab("L_ln_end")
    a("s_endpgm")
    return kd(name, 88, 44, 88)


def swapbits23(a, dst, src, tmp):
    a(f"v_and_b32 v{dst}, 0x13, v{src}")
    a(f"v_and_b32 v{tmp}, 4, v{src}")
    a(f"v_lshl_or_b32 v{dst}, v{tmp}, 1, v{dst}")
    a(f"v_and_b32 v{tmp}, 8, v{src}")
    a(f"v_lshrrev_b32 v{tmp}, 1, v{tmp}")
    a(f"v_or_b32 v{dst}, v{dst}, v{tmp}")


def tr_lane_part(a, dst, pitch):
    a(f"v_lshrrev_b32 v{dst}, 5, v1")
    a(f"v_lshlrev_b32 v{dst}, 4, v{dst}")
    a("v_bfe_u32 v3, v1, 4, 1")
    a(f"v_lshl_add_u32 v{dst}, v3, 2, v{dst}")
    a("v_bfe_u32 v3, v1, 2, 2")
    a(f"v_add_u32 v{dst}, v{dst}, v3")
    a(f"v_mul_u32_u24 v{dst}, {pitch}, v{dst}")
    a("v_and_b32 v3, 3, v1")
    a(f"v_lshl_add_u32 v{dst}, v3, 3, v{dst}")


def gen_ka(a):
    name = "ka_kernel"
    head(a, name)
    a("s_cmp_ge_u32 s2, 256")
    a("s_cbranch_scc1 L_ka_end")
    a.stamp(0)
    a("s_load_dwordx4 s[4:7], s[0:1], 32")
    a("s_load_dwordx2 s[26:27], s[0:1], 72")
    a("s_load_dwordx2 s[36:37], s[0:1], 8")
    a("s_load_dwordx2 s[40:41], s[0:1], 48")
    a("s_load_dwordx2 s[42:43], s[0:1], 16")
    a("v_and_b32 v1, 63, v0")
    a("v_lshrrev_b32 v2, 6, v0")
    a("s_nop 0")
    a("v_readfirstlane_b32 s20, v2")
    a("s_and_b32 s38, s2, 7")
    a("s_lshr_b32 s39, s2, 3")
    a("s_cmp_ge_u32 s39, 24")
    a("s_cbranch_scc1 L_ka_qkv")
    gen_ffn_part(a)
    a("s_branch L_ka_end")
    a.lab("L_ka_qkv")
    a.reset()
    gen_qkv_part(a)
    a.lab("L_ka_end")
    a("s_endpgm")
    return kd(name, 256, 56, 128)


def gen_ffn_part(a):
    RT = 2
    NT = 12
    D = 3
    RING = 5
    NR = 6
    PD = 4
    PITCH = 416
    MAT = 32 * PITCH
    KSB = 2 * MAT
    VB = 10
    VA = 14
    VRB = 16
    VRC = 17
    VL16 = 19
    AF = 20
    WF = 44
    UV = 64

    def accG(i, t):
        b = (i * NT + t) * 4
        return f"a[{b}:{b+3}]"

    def accU_idx(i, t):
        n = i * NT + t
        if n < 8:
            return ("a", 96 + n * 4)
        return ("v", UV + (n - 8) * 4)

    def accU(i, t):
        k, b = accU_idx(i, t)
        return f"{k}[{b}:{b+3}]"

    a("s_mul_i32 s22, s39, 43")
    a("s_lshr_b32 s22, s22, 7")
    a("s_mul_i32 s23, s22, 3")
    a("s_sub_u32 s23, s39, s23")
    a("s_mul_i32 s21, s38, 3")
    a("s_add_u32 s21, s21, s23")
    a(f"v_lshlrev_b32 v{VL16}, 4, v1")
    a("s_lshl_b32 s23, s22, 4")
    a("s_lshl_b32 s24, s20, 1")
    a("s_add_u32 s28, s23, s24")
    a("s_mul_i32 s23, s28, 18432")
    for i in range(RT):
        a(f"s_add_u32 s24, s23, {i*18432}")
        a(f"v_add_u32 v{VA+i}, s24, v{VL16}")
    a("s_and_b32 s24, s20, 3")
    a("s_mul_i32 s25, s24, 208")
    a("s_mul_i32 s23, s21, 384")
    for i in range(4):
        a(f"s_add_u32 s29, s25, {64*i}")
        a("v_add_u32 v2, s29, v1")
        a.vdiv(3, 2, 26, 1024, 30)
        a("v_mul_u32_u24 v4, 26, v3")
        a("v_sub_u32 v4, v2, v4")
        a("v_min_u32 v4, 23, v4")
        a("v_min_u32 v3, 31, v3")
        swapbits23(a, 5, 3, 6)
        a("v_mul_u32_u24 v5, 9216, v5")
        a("v_lshl_add_u32 v5, v4, 4, v5")
        a(f"v_add_u32 v{VB+i}, s23, v5")
    tr_lane_part(a, VRB, PITCH)
    a("s_lshr_b32 s23, s20, 2")
    a(f"s_mul_i32 s29, s23, {MAT}")
    a(f"s_mul_i32 s30, s24, {MAT//4}")
    a("s_add_u32 s29, s29, s30")
    a("s_waitcnt lgkmcnt(0)")
    a("s_cmp_eq_u32 s23, 0")
    a("s_cselect_b32 s4, s4, s6")
    a("s_cselect_b32 s5, s5, s7")
    a.srd(12, 4, 576 * 9216)
    a.srd(8, 26, XN_BYTES, XN_OFF)
    a.srd(16, 26, HO_BYTES, HO_OFF)

    def dma_ops(ks):
        ops = []
        for i in range(4):
            def f(i=i):
                if i == 0:
                    a(f"s_mov_b32 s31, {ks*32*9216}")
                a(f"s_add_u32 m0, s29, {(ks%NR)*KSB + i*1024}")
                if i == 3:
                    a("s_mov_b64 exec, 0xffff")
                else:
                    a("s_nop 0")
                a.vmi(f"buffer_load_dwordx4 v{VB+i}, s[12:15], s31 offen lds", f"dma{ks}")
                if i == 3:
                    a("s_mov_b64 exec, -1")
            ops.append(f)
        return ops

    def aload_ops(ks):
        ops = []
        for i in range(RT):
            def f(i=i):
                if i == 0:
                    a(f"s_mov_b32 s32, {ks*1024}")
                r = AF + (ks % 3) * 8 + i * 4
                a.vmi(f"buffer_load_dwordx4 v[{r}:{r+3}], v{VA+i}, s[8:11], s32 offen", f"a{ks}")
            ops.append(f)
        return ops

    a.stamp(1)
    for ks in range(2):
        for f in dma_ops(ks): f()
        for f in aload_ops(ks): f()
    nxt = [2]
    a.srd(44, 40, 4608 * 1152)
    a.srd(48, 42, 576 * 1152)
    a("v_lshlrev_b32 v9, 6, v1")
    a("s_lshl_b32 s23, s39, 3")
    a("s_add_u32 s23, s23, s20")
    a("s_mul_i32 s23, s23, 2*4096")
    a("s_lshr_b32 s24, s38, 1")
    a("s_mul_i32 s25, s24, 1344*1152")
    a("s_add_u32 s25, s25, s23")
    a(f"s_sub_u32 s34, s23, {576*1152}")
    a(f"s_cmp_ge_u32 s23, {576*1152}")
    a("s_cselect_b32 s34, s34, 0x40000000")
    a("s_cmp_eq_u32 s24, 3")
    a("s_cselect_b32 s34, s34, 0x40000000")
    def pf_ops():
        ops = []
        for i in range(2):
            def f():
                a.vmi(f"buffer_load_dword v2, v9, s[44:47], s25 offen", "pf")
                a.vmi(f"buffer_load_dword v3, v9, s[48:51], s34 offen", "pf")
                a("s_add_u32 s25, s25, 4096")
                a("s_add_u32 s34, s34, 4096")
            ops.append(f)
        return ops
    a.stamp(2)
    pend = []
    NF = 2 * NT
    total = 18 * NF

    def read_frag(m):
        ks = m // NF
        f = m % NF
        if f == 0:
            a.wait_vm(f"dma{ks}")
            a("s_barrier")
            if ks == 0:
                a.stamp(3)
            a(f"v_add_u32 v{VRC + ks % 2}, {(ks % NR) * KSB}, v{VRB}")
            k = 0
            while nxt[0] < 18 and nxt[0] <= ks + PD and k < 2:
                pend.extend(dma_ops(nxt[0]))
                nxt[0] += 1
                k += 1
            if ks == 4:
                pend.extend(pf_ops())
        off = (MAT if f >= NT else 0) + (f % NT) * 32
        r = WF + (m % RING) * 4
        a.lgi(f"ds_read_b64_tr_b16 v[{r}:{r+1}], v{VRC + ks % 2} offset:{off}", f"w{m}")
        a.lgi(f"ds_read_b64_tr_b16 v[{r+2}:{r+3}], v{VRC + ks % 2} offset:{off + 8*PITCH}", f"w{m}")

    for m in range(D):
        read_frag(m)
    for n in range(total):
        ks = n // NF
        f = n % NF
        if n + D < total:
            read_frag(n + D)
        if f == 0:
            a.wait_vm(f"a{ks}")
            if ks + 2 < 18:
                pend[0:0] = aload_ops(ks + 2)
        a.wait_lg(f"w{n}")
        r = WF + (n % RING) * 4
        for i in range(RT):
            ar = AF + (ks % 3) * 8 + i * 4
            acc = accG(i, f) if f < NT else accU(i, f - NT)
            c = "0" if ks == 0 else acc
            a(f"v_mfma_f32_16x16x32_bf16 {acc}, v[{r}:{r+3}], v[{ar}:{ar+3}], {c}")
        if pend and n % 2 == 1:
            pend.pop(0)()
    assert not pend
    a.stamp(4)
    a("s_nop 7")
    a("s_nop 3")
    a("s_mul_i32 s24, s21, 6")
    a("s_mul_i32 s25, s28, 162")
    a("s_add_u32 s24, s24, s25")
    a("s_lshl_b32 s24, s24, 10")

    def htile(i, t, dst):
        for r in range(4):
            a(f"v_accvgpr_read_b32 v{2+r}, a{(i*NT+t)*4+r}")
        k, b = accU_idx(i, t)
        if k == "a":
            for r in range(4):
                a(f"v_accvgpr_read_b32 v{10+r}, a{b+r}")
            b = 10
        for r in range(4):
            a(f"v_max_f32 v{2+r}, 0, v{2+r}")
        for r in range(4):
            a(f"v_mul_f32 v{2+r}, v{2+r}, v{b+r}")
        a(f"v_cvt_pk_bf16_f32 v{dst}, v2, v3")
        a(f"v_cvt_pk_bf16_f32 v{dst+1}, v4, v5")

    cnt = 0
    for i in range(RT):
        a(f"s_add_u32 s25, s24, {i*162*1024}")
        a(f"s_add_u32 s33, s25, 4096")
        for blk in range(6):
            dst = AF + (cnt % 8) * 4; cnt += 1
            htile(i, 2 * blk, dst)
            htile(i, 2 * blk + 1, dst + 2)
            if blk >= 4:
                a(f"buffer_store_dwordx4 v[{dst}:{dst+3}], v{VL16}, s[16:19], s33 offen offset:{(blk-4)*1024}")
            else:
                a(f"buffer_store_dwordx4 v[{dst}:{dst+3}], v{VL16}, s[16:19], s25 offen offset:{blk*1024}")
    a.stamp(5)
    if "stamp" in EXP:
        a("s_waitcnt vmcnt(0) lgkmcnt(0)")
        a.stamp(6)
        a("s_waitcnt lgkmcnt(0)")
        a.stamp_out(7, 8)


def gen_qkv_part(a):
    import struct
    NR = 4
    KS = 36864
    VB = 10
    VR = 15
    VL16 = 22
    VT = 23
    VW = 31
    AF = 46
    WF = 86
    AV = 104
    P = 968

    def acc_idx(i, j):
        n = i * 7 + j
        if n < 32:
            return ("a", n * 4)
        return ("v", AV + (n - 32) * 4)

    def acc(i, j):
        k, b = acc_idx(i, j)
        return f"{k}[{b}:{b+3}]"

    a("s_lshr_b32 s21, s38, 1")
    a("s_and_b32 s22, s38, 1")
    a("s_lshl_b32 s22, s22, 3")
    a("s_add_u32 s22, s22, s39")
    a("s_sub_u32 s22, s22, 24")
    a(f"v_lshlrev_b32 v{VL16}, 4, v1")
    a("s_lshl_b32 s28, s22, 3")
    a("s_lshr_b32 s35, s20, 2")
    a("s_and_b32 s53, s20, 3")
    a("s_mul_i32 s25, s21, 288")
    a("s_lshr_b32 s24, s20, 1")
    a("s_mul_i32 s24, s24, 1152")
    a("s_add_u32 s25, s25, s24")
    a("s_and_b32 s24, s20, 1")
    a("s_mul_i32 s24, s24, 288")
    a("s_sub_u32 s23, s28, 1")
    a("s_cmp_ge_u32 s20, 6")
    a("s_cselect_b64 s[30:31], -1, 0")
    for i in range(5):
        a(f"s_add_u32 s29, s24, {64*i}")
        a("v_add_u32 v2, s29, v1")
        a.vdiv(5, 2, 18, 640, 33)
        a("v_mul_u32_u24 v6, 18, v5")
        a("v_sub_u32 v6, v2, v6")
        a("v_min_u32 v5, 31, v5")
        swapbits23(a, 9, 5, 7)
        a("v_mul_u32_u24 v9, 3456, v9")
        a("v_lshl_add_u32 v9, v6, 4, v9")
        a("v_add_u32 v9, s25, v9")
        a("v_lshrrev_b32 v8, 6, v2")
        a("v_add_u32 v8, s23, v8")
        a("v_max_i32 v8, 0, v8")
        a("v_mul_u32_u24 v8, 18432, v8")
        a("v_and_b32 v7, 63, v2")
        a("v_lshl_add_u32 v8, v7, 4, v8")
        a(f"v_cndmask_b32 v{VB+i}, v9, v8, s[30:31]")
    tr_lane_part(a, 2, 288)
    a("v_and_b32 v4, 15, v1")
    a(f"v_mul_u32_u24 v4, {P}, v4")
    a(f"s_mul_i32 s23, s35, {4*16*P}")
    a("v_add_u32 v4, s23, v4")
    a("v_lshrrev_b32 v5, 4, v1")
    a("v_lshlrev_b32 v5, 2, v5")
    for j in range(7):
        a("s_mul_i32 s23, s53, 7")
        a(f"s_add_u32 s23, s23, {j}")
        a("s_min_u32 s23, s23, 26")
        a("s_mul_i32 s24, s23, 57")
        a("s_lshr_b32 s24, s24, 9")
        a("s_mul_i32 s25, s24, 9")
        a("s_sub_u32 s25, s23, s25")
        a("s_mul_i32 s29, s24, 9216")
        a("s_lshl_b32 s30, s25, 5")
        a("s_add_u32 s29, s29, s30")
        a(f"v_add_u32 v{VR+j}, s29, v2")
    assert all((u * 57) >> 9 == u // 9 for u in range(27))
    a("s_mul_i32 s29, s20, 4608")
    a("s_lshl_b32 s54, s35, 12")
    a("s_waitcnt lgkmcnt(0)")
    a.srd(8, 26, XN_BYTES, XN_OFF)
    a.srd(16, 26, HO_BYTES, HO_OFF)
    a("s_and_b32 s37, s37, 0xffff")
    a(f"s_mov_b32 s33, {576*3456}")
    a(f"s_mov_b32 s34, {32*3456}")
    a("s_cmp_ge_u32 s20, 6")
    a("s_cselect_b32 s12, s8, s36")
    a("s_cselect_b32 s13, s9, s37")
    a("s_cselect_b32 s14, s10, s33")
    a("s_mov_b32 s15, 0x00020000")
    a("s_cselect_b32 s34, 1024, s34")
    a("s_mov_b32 s31, 0")
    a(f"v_add_u32 v45, s54, v{VL16}")

    def dma_ops(ks):
        ops = []
        for i in range(5):
            def f(i=i):
                a(f"s_add_u32 m0, s29, {(ks%NR)*KS + i*1024}")
                if i == 4:
                    a("s_mov_b32 exec_hi, 0")
                else:
                    a("s_nop 0")
                a.vmi(f"buffer_load_dwordx4 v{VB+i}, s[12:15], s31 offen lds", f"dma{ks}")
                if i == 4:
                    a("s_mov_b32 exec_hi, -1")
                    a("s_add_u32 s31, s31, s34")
            ops.append(f)
        return ops

    def addr_op(ks):
        ro = (ks % NR) * KS
        a(f"v_add_u32 v{VT+7}, {ro + 27648}, v45")
        for j in range(7):
            a(f"v_add_u32 v{VT+j}, {ro}, v{VR+j}")

    def areads(ks):
        ops = []
        for i in range(5):
            def f(i=i):
                r = AF + (ks % 2) * 20 + i * 4
                a.lgi(f"ds_read_b128 v[{r}:{r+3}], v{VT+7} offset:{i*1024}", f"ar{ks}")
            ops.append(f)
        return ops

    def wread(m):
        ks, j = m // 7, m % 7
        r = WF + (m % 4) * 4
        a.lgi(f"ds_read_b64_tr_b16 v[{r}:{r+1}], v{VT+j}", f"w{m}")
        a.lgi(f"ds_read_b64_tr_b16 v[{r+2}:{r+3}], v{VT+j} offset:{8*288}", f"w{m}")

    a.stamp(1)
    for ks in range(NR):
        for f in dma_ops(ks): f()
    for j in range(7):
        a("s_mul_i32 s23, s53, 7")
        a(f"s_add_u32 s23, s23, {j}")
        a("s_min_u32 s23, s23, 26")
        a("s_mul_i32 s24, s23, 57")
        a("s_lshr_b32 s24, s24, 9")
        a("s_mul_i32 s25, s24, 9")
        a("s_sub_u32 s25, s23, s25")
        a("s_lshl_b32 s30, s25, 4")
        a("s_mul_i32 s55, s24, 320")
        for e in range(2):
            a(f"v_add_u32 v6, s30, v5")
            if e:
                a("v_add_u32 v6, 2, v6")
            a.vdiv(7, 6, 18, 160, 52)
            a("v_mul_u32_u24 v8, 18, v7")
            a("v_sub_u32 v8, v6, v8")
            a("v_mul_u32_u24 v7, 40, v7")
            a("v_lshl_add_u32 v7, v8, 1, v7")
            a("v_add_u32 v7, v7, v4")
            a(f"v_add_u32 v{VW+2*j+e}, s55, v7")
    a.stamp(2)
    a.wait_vm("dma0")
    a("s_barrier")
    a.stamp(3)
    addr_op(0)
    for f in areads(0): f()
    for m in range(3):
        wread(m)
    for ks in range(18):
        pend = []
        for j in range(7):
            m = ks * 7 + j
            nxt = m + 3
            if nxt < 18 * 7:
                if nxt % 7 == 0:
                    a("s_waitcnt lgkmcnt(0)")
                    a.lg = []
                    a.wait_vm(f"dma{ks+1}")
                    a("s_barrier")
                    addr_op(ks + 1)
                    pend += areads(ks + 1)
                    if ks + NR < 18:
                        pend += dma_ops(ks + NR)
                wread(nxt)
            if j == 0:
                a.wait_lg(f"ar{ks}")
            a.wait_lg(f"w{m}")
            r = WF + (m % 4) * 4
            for i in range(5):
                ar = AF + (ks % 2) * 20 + i * 4
                c = "0" if ks == 0 else acc(i, j)
                a(f"v_mfma_f32_16x16x32_bf16 {acc(i,j)}, v[{r}:{r+3}], v[{ar}:{ar+3}], {c}")
                if pend and i % 2 == 1:
                    pend.pop(0)()
        while pend:
            pend.pop(0)()
    a("s_waitcnt vmcnt(0) lgkmcnt(0)")
    a.stamp(4)
    a.reset()
    a("s_nop 7")
    a("s_barrier")
    T = 46
    n = 0
    for i in range(5):
        for j in range(7):
            k, b = acc_idx(i, j)
            t = T + (n % 8) * 6; n += 1
            if k == "a":
                for r in range(4):
                    a(f"v_accvgpr_read_b32 v{t+r}, a{b+r}")
                b = t
            a(f"v_cvt_pk_bf16_f32 v{t+4}, v{b}, v{b+1}")
            a(f"v_cvt_pk_bf16_f32 v{t+5}, v{b+2}, v{b+3}")
            oo = i * 16 * P
            a(f"ds_write_b32 v{VW+2*j}, v{t+4} offset:{oo}")
            a(f"ds_write_b32 v{VW+2*j+1}, v{t+5} offset:{oo}")
    a("s_waitcnt lgkmcnt(0)")
    a("s_barrier")
    a.stamp(5)
    R = 2
    NJ = R + 7
    a("v_and_b32 v4, 7, v1")
    a("v_lshrrev_b32 v5, 3, v1")
    a("s_lshl_b32 s23, s20, 3")
    a("v_add_u32 v5, s23, v5")
    a("v_and_b32 v6, 1, v5")
    a("v_lshrrev_b32 v5, 1, v5")
    a("v_lshl_add_u32 v5, v5, 2, v6")
    a(f"v_mul_u32_u24 v2, {P}, v5")
    a("v_mul_u32_u24 v6, 40, v4")
    a("v_add_u32 v2, v2, v6")
    Q = 10
    KB = 30
    UP = 50
    LG = 68
    O = 84

    def rdvec(dst, off, tag):
        for p in range(4):
            a.lgi(f"ds_read_b64 v[{dst+2*p}:{dst+2*p+1}], v2 offset:{off+8*p}", tag)
        a.lgi(f"ds_read_b32 v{dst+8}, v2 offset:{off+32}", tag)

    for r in range(R):
        rdvec(Q + 10 * r, (16 + 2 * r) * P, f"q{r}")
    def krow(jj, sec):
        return (16 + 2 * (jj - 7)) * P + sec * 320
    rdvec(KB, krow(0, 1), "k0")
    for jj in range(NJ):
        a.wait_lg(f"k{jj}")
        if jj + 1 < NJ:
            rdvec(KB + ((jj + 1) % 2) * 10, krow(jj + 1, 1), f"k{jj+1}")
        else:
            rdvec(KB + ((jj + 1) % 2) * 10, krow(0, 2), "v0")
        kb = KB + (jj % 2) * 10
        for r in range(R):
            w = r + 7 - jj
            if 0 <= w < 8:
                L = LG + r * 8 + w
                for p in range(9):
                    c = "0" if p == 0 else f"v{L}"
                    a(f"v_dot2_f32_bf16 v{L}, v{Q+10*r+p}, v{kb+p}, {c}")
    sc = struct.unpack("<I", struct.pack("<f", 18 ** -0.5))[0]
    neg = struct.unpack("<I", struct.pack("<f", -1e9))[0]
    l2e = struct.unpack("<I", struct.pack("<f", 1.4426950408889634))[0]
    a("s_nop 2")
    a("s_lshl_b32 s23, s22, 7")
    a("v_add_u32 v7, s23, v5")
    a(f"v_mov_b32 v8, {neg:#x}")
    for r in range(R):
        L = LG + r * 8
        for w in range(8):
            bf16_round_f32(a, L + w, 3)
            a(f"v_mul_f32 v{L+w}, {sc:#x}, v{L+w}")
            bf16_round_f32(a, L + w, 3)
        for w in range(r + 1, 8):
            a(f"v_cmp_le_u32 vcc, {2*(w-r)}, v7")
            a("s_nop 1")
            a(f"v_cndmask_b32 v{L+w}, v8, v{L+w}, vcc")
        a(f"v_max_f32 v6, v{L}, v{L+1}")
        for w in range(2, 8):
            a(f"v_max_f32 v6, v6, v{L+w}")
        for w in range(8):
            a(f"v_sub_f32 v{L+w}, v{L+w}, v6")
            a(f"v_mul_f32 v{L+w}, {l2e:#x}, v{L+w}")
            a(f"v_exp_f32 v{L+w}, v{L+w}")
        a("s_nop 0")
        a(f"v_add_f32 v9, v{L}, v{L+1}")
        for w in range(2, 8):
            a(f"v_add_f32 v9, v9, v{L+w}")
        a("v_rcp_f32 v9, v9")
        a("s_nop 0")
        for w in range(8):
            a(f"v_mul_f32 v{L+w}, v{L+w}, v9")
            bf16_round_f32(a, L + w, 3)
    started = set()
    vb0 = NJ % 2
    for jj in range(NJ):
        a.wait_lg(f"v{jj}")
        vb = KB + ((jj + vb0) % 2) * 10
        for p in range(9):
            a(f"v_lshlrev_b32 v{UP+2*p}, 16, v{vb+p}")
            a(f"v_and_b32 v{UP+2*p+1}, 0xffff0000, v{vb+p}")
        if jj + 1 < NJ:
            rdvec(KB + ((jj + 1 + vb0) % 2) * 10, krow(jj + 1, 2), f"v{jj+1}")
        for r in range(R):
            w = r + 7 - jj
            if 0 <= w < 8:
                L = LG + r * 8 + w
                for d in range(18):
                    if r not in started:
                        a(f"v_mul_f32 v{O+18*r+d}, v{L}, v{UP+d}")
                    else:
                        a(f"v_fmac_f32 v{O+18*r+d}, v{L}, v{UP+d}")
                started.add(r)
    a.stamp(6)
    a("s_mul_i32 s23, s21, 144")
    a("v_mul_u32_u24 v6, 18, v4")
    a("v_add_u32 v6, s23, v6")
    CP = 10
    for p in range(9):
        a(f"v_add_u32 v3, {2*p}, v6")
        a("v_lshrrev_b32 v8, 5, v3")
        a("v_add_u32 v8, 144, v8")
        a("v_lshlrev_b32 v8, 10, v8")
        a("v_bfe_u32 v9, v3, 2, 2")
        a("v_lshl_add_u32 v8, v9, 8, v8")
        a("v_bfe_u32 v9, v3, 4, 1")
        a("v_lshl_add_u32 v8, v9, 3, v8")
        a("v_and_b32 v9, 2, v3")
        a(f"v_lshl_add_u32 v{CP+p}, v9, 1, v8")
    a("s_mov_b32 s23, 162*1024")
    for r in range(R):
        a(f"v_add_u32 v3, {2*r}, v7")
        a("v_lshrrev_b32 v8, 4, v3")
        a("v_mul_lo_u32 v8, v8, s23")
        a("v_and_b32 v9, 15, v3")
        a("v_lshl_add_u32 v8, v9, 4, v8")
        for p in range(9):
            a(f"v_add_u32 v{30+10*r+p}, v8, v{CP+p}")
            a(f"v_cvt_pk_bf16_f32 v{50+10*r+p}, v{O+18*r+2*p}, v{O+18*r+2*p+1}")
            a(f"buffer_store_dword v{50+10*r+p}, v{30+10*r+p}, s[16:19], 0 offen")
    a.stamp(7)
    if "stamp" in EXP:
        a("s_waitcnt vmcnt(0) lgkmcnt(0)")
        a.stamp(8)
        a("s_waitcnt lgkmcnt(0)")
        a.stamp_out(9, 200, 128)


def gen_gemm2(a):
    name = "gemm2_kernel"
    head(a, name)
    NST = 21
    NRING = 8
    PD = 6
    NA = PD + 1
    D = 3
    RING = 5
    STG = 18432
    VB = 10
    VA = 13
    VR = 15
    VL16 = 18
    VX = 19
    AF = 24
    WF = AF + NA * 8
    ACC = WF + RING * 4

    def acc(i, t):
        b = ACC + (i * 9 + t) * 4
        return f"v[{b}:{b+3}]"

    a("s_cmp_ge_u32 s2, 256")
    a("s_cbranch_scc1 L_g2_end")
    a.stamp(0)
    a("s_load_dwordx2 s[4:5], s[0:1], 48")
    a("s_load_dwordx2 s[6:7], s[0:1], 16")
    a("s_load_dwordx2 s[26:27], s[0:1], 72")
    a("s_load_dwordx2 s[40:41], s[0:1], 0")
    a("s_load_dwordx4 s[44:47], s[0:1], 56")
    a("v_and_b32 v1, 63, v0")
    a("v_lshrrev_b32 v2, 6, v0")
    a("s_nop 0")
    a("v_readfirstlane_b32 s20, v2")
    a("s_and_b32 s23, s2, 7")
    a("s_lshr_b32 s24, s2, 3")
    a("s_lshr_b32 s21, s23, 1")
    a("s_and_b32 s23, s23, 1")
    a("s_lshl_b32 s23, s23, 3")
    a("s_lshr_b32 s22, s24, 2")
    a("s_add_u32 s22, s22, s23")
    a("s_and_b32 s34, s24, 3")
    a("s_and_b32 s38, s20, 3")
    a("s_lshr_b32 s39, s20, 2")
    a(f"v_lshlrev_b32 v{VL16}, 4, v1")
    a("s_lshl_b32 s23, s22, 3")
    a("s_lshl_b32 s24, s38, 1")
    a("s_add_u32 s28, s23, s24")
    a("s_mul_i32 s23, s28, 162*1024")
    for i in range(2):
        a(f"s_add_u32 s24, s23, {i*162*1024}")
        a(f"v_add_u32 v{VA+i}, s24, v{VL16}")
    a("s_mul_i32 s23, s20, 144")
    a("s_mul_i32 s25, s34, 288")
    for i in range(3):
        a(f"s_add_u32 s24, s23, {64*i}")
        a("v_add_u32 v2, s24, v1")
        a.vdiv(3, 2, 18, 1152 + 128, 24)
        a("v_mul_u32_u24 v4, 18, v3")
        a("v_sub_u32 v4, v2, v4")
        a("v_min_u32 v3, 63, v3")
        a("v_mul_u32_u24 v5, 1152, v3")
        a("v_lshl_add_u32 v5, v4, 4, v5")
        a(f"v_add_u32 v{VB+i}, s25, v5")
    a("v_lshrrev_b32 v2, 4, v1")
    a("v_lshlrev_b32 v2, 2, v2")
    a("v_bfe_u32 v3, v1, 2, 2")
    a("v_add_u32 v2, v2, v3")
    a("v_mul_u32_u24 v2, 288, v2")
    a("v_and_b32 v3, 3, v1")
    a("v_lshl_add_u32 v2, v3, 3, v2")
    a("s_mul_i32 s23, s39, 9216")
    a("v_add_u32 v2, s23, v2")
    for b in range(3):
        a(f"v_add_u32 v{VR+b}, {b*3*STG}, v2")
    a("s_mul_i32 s29, s20, 2304")
    a(f"s_mul_i32 s35, s21, {NST}")
    a("s_waitcnt lgkmcnt(0)")
    a("s_and_b32 s5, s5, 0xffff")
    a("s_and_b32 s7, s7, 0xffff")
    a("s_mov_b32 s15, 0x00020000")
    a(f"s_mov_b32 s36, {4608*1152}")
    a(f"s_mov_b32 s37, {576*1152}")
    a.srd(8, 26, HO_BYTES, HO_OFF)
    a.srd(16, 26, PART_BYTES, PART_OFF)

    def dma_ops(S):
        ops = []
        for i in range(3):
            def f(i=i):
                if i == 0:
                    a(f"s_add_u32 s30, s35, {S}")
                    a("s_sub_u32 s33, s30, 72")
                    a("s_cmp_lt_u32 s30, 72")
                    a("s_cselect_b32 s12, s4, s6")
                    a("s_cselect_b32 s13, s5, s7")
                    a(f"s_cselect_b32 s14, s36, s37")
                    a("s_cselect_b32 s30, s30, s33")
                    a(f"s_mul_i32 s31, s30, {64*1152}")
                a(f"s_add_u32 m0, s29, {(S%NRING)*STG + i*1024}")
                if i == 2:
                    a("s_mov_b64 exec, 0xffff")
                else:
                    a("s_nop 0")
                a.vmi(f"buffer_load_dwordx4 v{VB+i}, s[12:15], s31 offen lds", f"dma{S}")
                if i == 2:
                    a("s_mov_b64 exec, -1")
            ops.append(f)
        for i in range(2):
            def f(i=i):
                if i == 0:
                    a(f"s_add_u32 s32, s35, {S}")
                    a("s_lshl_b32 s32, s32, 1")
                    a("s_add_u32 s32, s32, s39")
                    a("s_cmp_lt_u32 s32, 162")
                    a("s_cselect_b32 s32, s32, 0x100000")
                    a("s_lshl_b32 s32, s32, 10")
                r = AF + (S % NA) * 8 + i * 4
                a.vmi(f"buffer_load_dwordx4 v[{r}:{r+3}], v{VA+i}, s[8:11], s32 offen", f"a{S}")
            ops.append(f)
        return ops

    a.stamp(1)
    nxt = [0]
    for S in range(2):
        for f in dma_ops(S): f()
    nxt[0] = 2
    a.stamp(2)
    pend = []
    total = NST * 9

    def read_frag(m):
        S = m // 9
        t = m % 9
        if t == 0:
            a.wait_vm(f"dma{S}")
            a("s_barrier")
            if S == 0:
                a.stamp(3)
            k = 0
            while nxt[0] < NST and nxt[0] <= S + PD and k < 2:
                pend.extend(dma_ops(nxt[0]))
                nxt[0] += 1
                k += 1
        rb = S % NRING
        off = (rb % 3) * STG + t * 32
        r = WF + (m % RING) * 4
        a.lgi(f"ds_read_b64_tr_b16 v[{r}:{r+1}], v{VR + rb // 3} offset:{off}", f"w{m}")
        a.lgi(f"ds_read_b64_tr_b16 v[{r+2}:{r+3}], v{VR + rb // 3} offset:{off + 16*288}", f"w{m}")

    for m in range(D):
        read_frag(m)
    for n in range(total):
        S = n // 9
        t = n % 9
        if n + D < total:
            read_frag(n + D)
        if t == 0:
            a.wait_vm(f"a{S}")
        a.wait_lg(f"w{n}")
        r = WF + (n % RING) * 4
        for i in range(2):
            ar = AF + (S % NA) * 8 + i * 4
            c = "0" if S == 0 else acc(i, t)
            a(f"v_mfma_f32_16x16x32_bf16 {acc(i,t)}, v[{r}:{r+3}], v[{ar}:{ar+3}], {c}")
            if pend:
                pend.pop(0)()
    while pend:
        pend.pop(0)()
    a.stamp(4)
    a("s_waitcnt vmcnt(0) lgkmcnt(0)")
    a.reset()
    a("s_nop 7")
    a("s_barrier")
    a("s_lshl_b32 s23, s38, 1")
    a("s_sub_u32 s24, 1, s39")
    a("s_add_u32 s24, s24, s23")
    a("s_mul_i32 s24, s24, 9216")
    a("s_add_u32 s25, s23, s39")
    a("s_mul_i32 s25, s25, 9216")
    a(f"v_add_u32 v2, s24, v{VL16}")
    a(f"v_add_u32 v3, s25, v{VL16}")
    a("s_cmp_eq_u32 s39, 0")
    a("s_cbranch_scc1 L_g2_x0")
    for giv, lab in ((0, None), (1, "L_g2_x0")):
        if lab:
            a.lab(lab)
        for t in range(9):
            a(f"ds_write_b128 v2, {acc(giv, t)} offset:{t*1024}")
        if giv == 0:
            a("s_waitcnt lgkmcnt(0)")
            for r in range(36):
                a(f"v_mov_b32 v{ACC+r}, v{ACC+36+r}")
            a("s_branch L_g2_x1")
    a.lab("L_g2_x1")
    a("s_waitcnt lgkmcnt(0)")
    a("s_barrier")
    for t in range(9):
        a(f"ds_read_b128 {acc(1, t)}, v3 offset:{t*1024}")
    a("s_waitcnt lgkmcnt(0)")
    for r in range(36):
        a(f"v_add_f32 v{ACC+r}, v{ACC+r}, v{ACC+36+r}")
    a("s_add_u32 s28, s28, s39")
    a("s_mul_i32 s24, s28, 36")
    a("s_mul_i32 s25, s34, 9")
    a("s_add_u32 s24, s24, s25")
    a("s_lshl_b32 s24, s24, 9")
    a(f"s_mul_i32 s23, s21, {2048*576*2}")
    a("s_add_u32 s23, s23, s24")
    a("v_lshlrev_b32 v2, 3, v1")
    for t in range(9):
        b = ACC + t * 4
        d = ACC + 36 + t * 2
        a(f"v_cvt_pk_bf16_f32 v{d}, v{b}, v{b+1}")
        a(f"v_cvt_pk_bf16_f32 v{d+1}, v{b+2}, v{b+3}")
        if t % 8 == 0:
            a(f"s_add_u32 s25, s23, {t*512}")
        a(f"buffer_store_dwordx2 v[{d}:{d+1}], v2, s[16:19], s25 offen offset:{(t%8)*512}")
    a.stamp(5)
    if "stamp" in EXP:
        a("s_waitcnt vmcnt(0) lgkmcnt(0)")
        a.stamp(6)
        a("s_waitcnt lgkmcnt(0)")
        a.stamp_out(7, 8, 0)
    a.lab("L_g2_end")
    a("s_endpgm")
    PB = ACC + 36
    nv = PB + 36
    assert nv <= 256, nv
    return kd(name, nv, 64, (nv + 3) // 4 * 4)


def gen_reduce(a):
    name = "reduce_kernel"
    head(a, name)
    a("s_cmp_ge_u32 s2, 1152")
    a("s_cbranch_scc1 L_r_end")
    a("s_load_dwordx2 s[4:5], s[0:1], 0")
    a("s_load_dwordx2 s[6:7], s[0:1], 56")
    a("s_load_dwordx2 s[26:27], s[0:1], 72")
    a("v_and_b32 v1, 63, v0")
    a("v_lshrrev_b32 v2, 6, v0")
    a("s_nop 0")
    a("v_readfirstlane_b32 s20, v2")
    a("s_lshl_b32 s21, s2, 2")
    a("s_add_u32 s21, s21, s20")
    a("s_lshl_b32 s22, s21, 9")
    a("s_mul_i32 s23, s21, 29128")
    a("s_lshr_b32 s23, s23, 20")
    a("s_mul_i32 s24, s23, 36")
    a("s_sub_u32 s24, s21, s24")
    assert all((u * 29128) >> 20 == u // 36 for u in range(4608))
    a("v_and_b32 v2, 15, v1")
    a("v_mul_u32_u24 v2, 1152, v2")
    a("v_lshrrev_b32 v3, 4, v1")
    a("v_lshl_add_u32 v2, v3, 3, v2")
    a("s_mul_i32 s25, s23, 18432")
    a("s_lshl_b32 s28, s24, 5")
    a("s_add_u32 s25, s25, s28")
    a("v_lshlrev_b32 v3, 3, v1")
    a("s_waitcnt lgkmcnt(0)")
    a.srd(8, 4, 2048 * 1152)
    a.srd(12, 6, 2048 * 1152)
    a.srd(16, 26, PART_BYTES, PART_OFF)
    for s in range(4):
        a(f"s_add_u32 s28, s22, {s*2048*576*2}")
        a(f"buffer_load_dwordx2 v[{12+2*s}:{13+2*s}], v3, s[16:19], s28 offen")
    a("buffer_load_dwordx2 v[4:5], v2, s[8:11], s25 offen")
    a("s_waitcnt vmcnt(0)")
    for s in range(4):
        for h in range(2):
            r = 12 + 2 * s + h
            if s == 0:
                a(f"v_lshlrev_b32 v{8+2*h}, 16, v{r}")
                a(f"v_and_b32 v{9+2*h}, 0xffff0000, v{r}")
            else:
                a(f"v_lshlrev_b32 v6, 16, v{r}")
                a(f"v_and_b32 v7, 0xffff0000, v{r}")
                a(f"v_add_f32 v{8+2*h}, v{8+2*h}, v6")
                a(f"v_add_f32 v{9+2*h}, v{9+2*h}, v7")
    a("v_lshlrev_b32 v6, 16, v4")
    a("v_and_b32 v7, 0xffff0000, v4")
    a("v_add_f32 v8, v8, v6")
    a("v_add_f32 v9, v9, v7")
    a("v_lshlrev_b32 v6, 16, v5")
    a("v_and_b32 v7, 0xffff0000, v5")
    a("v_add_f32 v10, v10, v6")
    a("v_add_f32 v11, v11, v7")
    a("v_cvt_pk_bf16_f32 v4, v8, v9")
    a("v_cvt_pk_bf16_f32 v5, v10, v11")
    a("buffer_store_dwordx2 v[4:5], v2, s[12:15], s25 offen")
    a.lab("L_r_end")
    a("s_endpgm")
    return kd(name, 24, 32, 24)


def main():
    a = A()
    hdr = open(f"cdna_kernels/{NAME}.s.ref").read().split("\n")
    for l in hdr:
        if l.startswith(";") and "@launch" not in l and "Override" not in l and "grid=ceil" not in l:
            a.raw(l)
    a.raw("; @launch kernel=ln_kernel grid=(384,1,1) block=(64,1,1) lds=0")
    a.raw("; @launch kernel=ka_kernel grid=(256,1,1) block=(512,1,1) lds=159744")
    a.raw("; @launch kernel=gemm2_kernel grid=(256,1,1) block=(512,1,1) lds=147456")
    a.raw("; @launch kernel=reduce_kernel grid=(1152,1,1) block=(256,1,1) lds=0")
    a.raw('.amdgcn_target "amdgcn-amd-amdhsa--gfx950"')
    a.raw(".text")
    for g in (gen_ln, gen_ka, gen_gemm2, gen_reduce):
        k = g(a)
        a.raw(k)
    out = sys.argv[1] if len(sys.argv) > 1 else f"cdna_kernels/{NAME}.s"
    open(out, "w").write("\n".join(a.L) + "\n")


main()
```

```python
import sys

NAME = "parallel_sum__sliding_local_dilated__glu_gated_reglu__prompt"
XN_OFF = 0
HO_OFF = 4 << 20
PART_OFF = 32 << 20
XN_BYTES = 128 * 18 * 1024
HO_BYTES = 128 * 162 * 1024
PART_BYTES = 4 * 2048 * 576 * 4


import os
EXP = os.environ.get("EXP", "")


class A:
    def __init__(self):
        self.L = []
        self.vm = []
        self.lg = []
        self.issued = set()
        self.waited = set()

    def __call__(self, s):
        if "nomfma" in EXP and s.startswith("v_mfma"):
            return
        if "nodma" in EXP and s.endswith(" lds"):
            s = "s_nop 0"
        if "noaload" in EXP and s.startswith("buffer_load_dwordx4 v[") :
            s = "s_nop 0"
        if "nods" in EXP and s.startswith("ds_read_b64_tr"):
            return
        if "nostore" in EXP and s.startswith("buffer_store"):
            return
        if os.environ.get("STF") and s.startswith("buffer_store"):
            s = s + " " + os.environ["STF"]
        if "empty" in EXP and s.startswith("s_cmp_ge_u32 s2,"):
            s = "s_cmp_ge_u32 s2, 0"
        self.L.append("    " + s)

    def lab(self, s):
        self.L.append(s + ":")

    def c(self, s):
        self.L.append("    ; " + s)

    def raw(self, s):
        self.L.append(s)

    def reset(self):
        self.vm = []
        self.lg = []
        self.issued = set()
        self.waited = set()

    def vmi(self, instr, tag):
        assert ("v", tag) not in self.waited, f"vm op {tag} issued after wait"
        self(instr)
        self.vm.append(tag)
        self.issued.add(("v", tag))

    def lgi(self, instr, tag):
        assert ("l", tag) not in self.waited, f"lg op {tag} issued after wait"
        self(instr)
        self.lg.append(tag)
        self.issued.add(("l", tag))

    def wait_vm(self, tag):
        assert ("v", tag) in self.issued, f"wait on never-issued vm {tag}"
        self.waited.add(("v", tag))
        idx = [i for i, t in enumerate(self.vm) if t == tag]
        if not idx:
            return
        i = idx[-1]
        n = len(self.vm) - (i + 1)
        assert n <= 63, n
        self(f"s_waitcnt vmcnt({n})")
        self.vm = self.vm[i + 1:]

    def wait_lg(self, tag):
        assert ("l", tag) in self.issued, f"wait on never-issued lg {tag}"
        self.waited.add(("l", tag))
        idx = [i for i, t in enumerate(self.lg) if t == tag]
        if not idx:
            return
        i = idx[-1]
        n = len(self.lg) - (i + 1)
        assert n <= 15, n
        self(f"s_waitcnt lgkmcnt({n})")
        self.lg = self.lg[i + 1:]

    def stamp(self, i):
        if "stamp" not in EXP:
            return
        self(f"s_memtime s[{64+2*i}:{65+2*i}]")
        if i == 0:
            self("s_memrealtime s[96:97]")

    def apples(self):
        pass

    def stamp_out(self, n, wg, base=0):
        if "stamp" not in EXP:
            return
        lab = f"L_st_{len(self.L)}"
        self(f"s_memrealtime s[{64+2*n}:{65+2*n}]")
        self("s_waitcnt lgkmcnt(0)")
        self(f"s_sub_u32 s{64+2*n}, s{64+2*n}, s96")
        self(f"s_add_u32 s{64+2*n}, s{64+2*n}, s64")
        n += 1
        self(f"s_cmp_lg_u32 s2, {wg}")
        self(f"s_cbranch_scc1 {lab}")
        self("s_load_dwordx2 s[60:61], s[0:1], 72")
        self("s_waitcnt lgkmcnt(0)")
        self(f"s_add_u32 s56, s60, {(200<<20) + self.kidx*256}")
        self("s_addc_u32 s57, s61, 0")
        self("s_and_b32 s57, s57, 0xffff")
        self("s_mov_b32 s58, 256")
        self("s_mov_b32 s59, 0x00020000")
        self("v_bfe_u32 v2, v0, 6, 1")
        self("v_lshlrev_b32 v2, 6, v2")
        self(f"v_add_u32 v2, {base}, v2")
        self("v_and_b32 v3, 63, v0")
        self("v_cmp_eq_u32 vcc, 0, v3")
        self("s_and_saveexec_b64 s[62:63], vcc")
        for i in range(n):
            self(f"s_sub_u32 s{64+2*i+1}, s{64+2*i}, s64") if i else None
        for i in range(n):
            self(f"v_mov_b32 v3, s{64+2*i+1 if i else 64}")
            self(f"buffer_store_dword v3, v2, s[56:59], 0 offen offset:{4*i}")
            self("s_nop 1")
        self("s_mov_b64 exec, s[62:63]")
        self.lab(lab)

    def srd(self, s, plo, nbytes, add=0):
        if add:
            self(f"s_add_u32 s{s}, s{plo}, {add}")
            self(f"s_addc_u32 s{s+1}, s{plo+1}, 0")
            self(f"s_and_b32 s{s+1}, s{s+1}, 0xffff")
        else:
            self(f"s_mov_b32 s{s}, s{plo}")
            self(f"s_and_b32 s{s+1}, s{plo+1}, 0xffff")
        self(f"s_mov_b32 s{s+2}, {nbytes}")
        self(f"s_mov_b32 s{s+3}, 0x00020000")

    def vdiv(self, dst, src, d, maxv, tmp_s):
        for sh in range(8, 24):
            m = -(-(1 << sh) // d)
            if m >= (1 << 24) or maxv * m >= (1 << 32):
                continue
            if all((x * m) >> sh == x // d for x in range(maxv)):
                break
        else:
            raise Exception("no magic")
        self(f"s_mov_b32 s{tmp_s}, {m}")
        self(f"v_mul_u32_u24 v{dst}, s{tmp_s}, v{src}")
        self(f"v_lshrrev_b32 v{dst}, {sh}, v{dst}")


def kd(name, vgpr, sgpr, accum):
    if "stamp" in EXP:
        sgpr = 100
    return f""".section .rodata,"a"
.p2align 6
.amdhsa_kernel {name}
  .amdhsa_next_free_vgpr {vgpr}
  .amdhsa_next_free_sgpr {sgpr}
  .amdhsa_accum_offset {accum}
  .amdhsa_group_segment_fixed_size 0
  .amdhsa_kernarg_size 80
  .amdhsa_user_sgpr_count 2
  .amdhsa_user_sgpr_kernarg_segment_ptr 1
  .amdhsa_system_sgpr_workgroup_id_x 1
.end_amdhsa_kernel
.text
"""


def head(a, name):
    a.raw(f".globl {name}")
    a.raw(".p2align 8")
    a.raw(f".type {name},@function")
    a.lab(name)
    a.reset()
    a.kidx = getattr(a, "kidx", -1) + 1


def bf16_round_f32(a, v, tmp):
    a(f"v_cvt_pk_bf16_f32 v{tmp}, v{v}, v{v}")
    a(f"v_lshlrev_b32 v{v}, 16, v{tmp}")


def gen_ln(a):
    import struct
    name = "ln_kernel"
    head(a, name)
    NPF = int(os.environ.get("NPF", "64"))
    a(f"s_cmp_ge_u32 s2, {128+NPF}")
    a("s_cbranch_scc1 L_ln_end")
    a("v_lshrrev_b32 v8, 6, v0")
    a("v_and_b32 v0, 63, v0")
    a("v_readfirstlane_b32 s30, v8")
    a("s_cmp_ge_u32 s2, 128")
    a("s_cbranch_scc1 L_ln_pf")
    a("s_load_dwordx2 s[4:5], s[0:1], 0")
    a("s_load_dwordx2 s[6:7], s[0:1], 72")
    a("v_and_b32 v1, 15, v0")
    a("v_lshrrev_b32 v2, 4, v0")
    a("v_mul_u32_u24 v3, 1152, v1")
    a("v_lshl_add_u32 v3, v2, 4, v3")
    a("s_mul_i32 s3, s2, 18432")
    a("s_lshl_b32 s16, s30, 6")
    a("s_add_u32 s17, s3, s16")
    a("s_lshl_b32 s16, s30, 10")
    a("s_add_u32 s18, s3, s16")
    a("v_mov_b32 v4, 0x3f803f80")
    a("v_lshlrev_b32 v14, 4, v0")
    a("v_xor_b32 v15, 16, v0")
    a("v_lshlrev_b32 v15, 2, v15")
    a("v_xor_b32 v13, 32, v0")
    a("v_lshlrev_b32 v13, 2, v13")
    a("s_cmp_lt_u32 s30, 2")
    a("s_cselect_b32 s19, 0, 0x40000000")
    a("s_waitcnt lgkmcnt(0)")
    a.srd(8, 4, 2048 * 1152)
    a.srd(12, 6, XN_BYTES, XN_OFF)
    B = 16
    for j in range(5):
        if j == 4:
            a("s_add_u32 s17, s17, s19")
        a.vmi(f"buffer_load_dwordx4 v[{B+4*j}:{B+4*j+3}], v3, s[8:11], s17 offen offset:{j*256}", f"x{j}")
    for i in range(5, 13):
        a(f"v_mov_b32 v{i}, 0")
    for j in range(5):
        a.wait_vm(f"x{j}")
        for jj in range(4):
            r = B + 4 * j + jj
            a(f"v_dot2_f32_bf16 v{5+jj}, v{r}, v4, v{5+jj}")
            a(f"v_dot2_f32_bf16 v{9+jj}, v{r}, v{r}, v{9+jj}")
    a("s_nop 3")
    a("v_add_f32 v5, v5, v6")
    a("v_add_f32 v7, v7, v8")
    a("v_add_f32 v9, v9, v10")
    a("v_add_f32 v11, v11, v12")
    a("v_add_f32 v10, v5, v7")
    a("v_add_f32 v11, v9, v11")
    a("v_lshlrev_b32 v7, 3, v0")
    a("s_lshl_b32 s16, s30, 9")
    a("v_add_u32 v7, s16, v7")
    a("ds_write_b64 v7, v[10:11]")
    a("v_lshlrev_b32 v7, 3, v1")
    a("s_waitcnt lgkmcnt(0)")
    a("s_barrier")
    for i in range(16):
        a(f"ds_read_b64 v[{40+2*i}:{41+2*i}], v7 offset:{i*128}")
        if i == 7:
            a("s_waitcnt lgkmcnt(0)")
    a("s_waitcnt lgkmcnt(0)")
    for st in (8, 4, 2, 1):
        for i in range(st):
            a(f"v_add_f32 v{40+2*i}, v{40+2*i}, v{40+2*(i+st)}")
            a(f"v_add_f32 v{41+2*i}, v{41+2*i}, v{41+2*(i+st)}")
    invb = struct.unpack("<I", struct.pack("<f", 1.0 / 576.0))[0]
    a(f"v_mul_f32 v5, {invb:#x}, v40")
    a(f"v_mul_f32 v9, {invb:#x}, v41")
    a("v_fma_f32 v9, -v5, v5, v9")
    a("v_max_f32 v9, 0, v9")
    bf16_round_f32(a, 5, 6)
    bf16_round_f32(a, 9, 6)
    eps = struct.unpack("<I", struct.pack("<f", 1e-5))[0]
    a(f"v_add_f32 v9, {eps:#x}, v9")
    bf16_round_f32(a, 9, 6)
    a("v_sqrt_f32 v9, v9")
    a("s_nop 0")
    bf16_round_f32(a, 9, 6)
    a("v_rcp_f32 v9, v9")
    a("s_nop 0")
    for j in range(5):
        for jj in range(4):
            r = B + 4 * j + jj
            a(f"v_lshlrev_b32 v6, 16, v{r}")
            a(f"v_and_b32 v7, 0xffff0000, v{r}")
            a("v_sub_f32 v6, v6, v5")
            a("v_sub_f32 v7, v7, v5")
            a("v_cvt_pk_bf16_f32 v8, v6, v7")
            a("v_lshlrev_b32 v6, 16, v8")
            a("v_and_b32 v7, 0xffff0000, v8")
            a("v_mul_f32 v6, v6, v9")
            a("v_mul_f32 v7, v7, v9")
            a(f"v_cvt_pk_bf16_f32 v{r}, v6, v7")
        if j == 4:
            a("s_add_u32 s18, s18, s19")
        a(f"buffer_store_dwordx4 v[{B+4*j}:{B+4*j+3}], v14, s[12:15], s18 offen")
        a("s_add_u32 s18, s18, 4096")
    a("s_branch L_ln_end")
    a.lab("L_ln_pf")
    a("s_load_dwordx4 s[4:7], s[0:1], 8")
    a("s_load_dwordx4 s[24:27], s[0:1], 32")
    a("s_load_dwordx2 s[28:29], s[0:1], 48")
    a("s_sub_u32 s3, s2, 128")
    a("s_and_b32 s20, s3, 7")
    a("s_lshr_b32 s21, s3, 3")
    a("s_lshl_b32 s21, s21, 2")
    a("s_add_u32 s21, s21, s30")
    a.vdiv(2, 0, 18, 64, 22)
    a("v_mul_u32_u24 v3, 18, v2")
    a("v_sub_u32 v3, v0, v3")
    a("v_cmp_gt_u32 vcc, 54, v0")
    a("s_nop 1")
    a("v_cndmask_b32 v2, 0, v2, vcc")
    a("v_cndmask_b32 v3, 0, v3, vcc")
    a("v_mul_u32_u24 v4, 9216, v2")
    a("v_lshl_add_u32 v4, v3, 6, v4")
    a("s_mul_i32 s22, s20, 1152")
    a("v_add_u32 v4, s22, v4")
    a.vdiv(6, 3, 6, 64, 22)
    a("v_mul_u32_u24 v7, 6, v6")
    a("v_sub_u32 v7, v3, v7")
    a("v_mul_u32_u24 v5, 3456, v2")
    a("v_mul_u32_u24 v6, 1152, v6")
    a("v_add_u32 v5, v5, v6")
    a("v_lshl_add_u32 v5, v7, 6, v5")
    a("s_lshr_b32 s22, s20, 1")
    a("s_mul_i32 s22, s22, 288")
    a("v_add_u32 v5, s22, v5")
    a("v_lshlrev_b32 v6, 6, v0")
    a("s_waitcnt lgkmcnt(0)")
    a.srd(8, 24, 576 * 9216)
    a.srd(12, 26, 576 * 9216)
    a.srd(16, 4, 576 * 3456)
    a.srd(32, 28, 4608 * 1152)
    a.srd(36, 6, 576 * 1152)
    PFN = int(os.environ.get("PFN", "2"))
    a(f"s_mul_i32 s22, s21, {3*PFN*9216}")
    for i in range(PFN):
        a(f"s_add_u32 s23, s22, {i*3*9216}")
        a("buffer_load_dword v10, v4, s[8:11], s23 offen")
        a("buffer_load_dword v11, v4, s[12:15], s23 offen")
    a(f"s_mul_i32 s22, s21, {3*PFN*3456}")
    for i in range(PFN):
        a(f"s_add_u32 s23, s22, {i*3*3456}")
        a("buffer_load_dword v12, v5, s[16:19], s23 offen")
    a.lab("L_ln_end")
    a("s_endpgm")
    return kd(name, 88, 44, 88)


def swapbits23(a, dst, src, tmp):
    a(f"v_and_b32 v{dst}, 0x13, v{src}")
    a(f"v_and_b32 v{tmp}, 4, v{src}")
    a(f"v_lshl_or_b32 v{dst}, v{tmp}, 1, v{dst}")
    a(f"v_and_b32 v{tmp}, 8, v{src}")
    a(f"v_lshrrev_b32 v{tmp}, 1, v{tmp}")
    a(f"v_or_b32 v{dst}, v{dst}, v{tmp}")


def tr_lane_part(a, dst, pitch):
    a(f"v_lshrrev_b32 v{dst}, 5, v1")
    a(f"v_lshlrev_b32 v{dst}, 4, v{dst}")
    a("v_bfe_u32 v3, v1, 4, 1")
    a(f"v_lshl_add_u32 v{dst}, v3, 2, v{dst}")
    a("v_bfe_u32 v3, v1, 2, 2")
    a(f"v_add_u32 v{dst}, v{dst}, v3")
    a(f"v_mul_u32_u24 v{dst}, {pitch}, v{dst}")
    a("v_and_b32 v3, 3, v1")
    a(f"v_lshl_add_u32 v{dst}, v3, 3, v{dst}")


def gen_ka(a):
    name = "ka_kernel"
    head(a, name)
    a("s_cmp_ge_u32 s2, 256")
    a("s_cbranch_scc1 L_ka_end")
    a.stamp(0)
    a("s_load_dwordx4 s[4:7], s[0:1], 32")
    a("s_load_dwordx2 s[26:27], s[0:1], 72")
    a("s_load_dwordx2 s[36:37], s[0:1], 8")
    a("s_load_dwordx2 s[40:41], s[0:1], 48")
    a("s_load_dwordx2 s[42:43], s[0:1], 16")
    a("v_and_b32 v1, 63, v0")
    a("v_lshrrev_b32 v2, 6, v0")
    a("s_nop 0")
    a("v_readfirstlane_b32 s20, v2")
    a("s_and_b32 s38, s2, 7")
    a("s_lshr_b32 s39, s2, 3")
    a("s_cmp_ge_u32 s39, 24")
    a("s_cbranch_scc1 L_ka_qkv")
    gen_ffn_part(a)
    a("s_branch L_ka_end")
    a.lab("L_ka_qkv")
    a.reset()
    gen_qkv_part(a)
    a.lab("L_ka_end")
    a("s_endpgm")
    return kd(name, 256, 64, 128)


def gen_ffn_part(a):
    RT = 2
    NT = 12
    D = int(os.environ.get("FD", "4"))
    RING = 5
    NR = 6
    PD = 4
    PITCH = 416
    MAT = 32 * PITCH
    KSB = 2 * MAT
    VB = 10
    VA = 14
    VRB = 16
    VRC = 17
    VL16 = 19
    AF = 20
    WF = 44
    UV = 64

    def accG(i, t):
        b = (i * NT + t) * 4
        return f"a[{b}:{b+3}]"

    def accU_idx(i, t):
        n = i * NT + t
        if n < 8:
            return ("a", 96 + n * 4)
        return ("v", UV + (n - 8) * 4)

    def accU(i, t):
        k, b = accU_idx(i, t)
        return f"{k}[{b}:{b+3}]"

    a("s_mul_i32 s22, s39, 43")
    a("s_lshr_b32 s22, s22, 7")
    a("s_mul_i32 s23, s22, 3")
    a("s_sub_u32 s23, s39, s23")
    a("s_mul_i32 s21, s38, 3")
    a("s_add_u32 s21, s21, s23")
    a(f"v_lshlrev_b32 v{VL16}, 4, v1")
    a("s_lshl_b32 s23, s22, 4")
    a("s_lshl_b32 s24, s20, 1")
    a("s_add_u32 s28, s23, s24")
    a("s_mul_i32 s23, s28, 18432")
    for i in range(RT):
        a(f"s_add_u32 s24, s23, {i*18432}")
        a(f"v_add_u32 v{VA+i}, s24, v{VL16}")
    a("s_and_b32 s24, s20, 3")
    a("s_mul_i32 s25, s24, 208")
    a("s_mul_i32 s23, s21, 384")
    for i in range(4):
        a(f"s_add_u32 s29, s25, {64*i}")
        a("v_add_u32 v2, s29, v1")
        a.vdiv(3, 2, 26, 1024, 30)
        a("v_mul_u32_u24 v4, 26, v3")
        a("v_sub_u32 v4, v2, v4")
        a("v_min_u32 v4, 23, v4")
        a("v_min_u32 v3, 31, v3")
        swapbits23(a, 5, 3, 6)
        a("v_mul_u32_u24 v5, 9216, v5")
        a("v_lshl_add_u32 v5, v4, 4, v5")
        a(f"v_add_u32 v{VB+i}, s23, v5")
    tr_lane_part(a, VRB, PITCH)
    a("s_lshr_b32 s23, s20, 2")
    a(f"s_mul_i32 s29, s23, {MAT}")
    a(f"s_mul_i32 s30, s24, {MAT//4}")
    a("s_add_u32 s29, s29, s30")
    a("s_waitcnt lgkmcnt(0)")
    a("s_mov_b64 s[60:61], s[4:5]")
    a("s_mov_b64 s[62:63], s[6:7]")
    a("s_cmp_eq_u32 s23, 0")
    a("s_cselect_b32 s4, s4, s6")
    a("s_cselect_b32 s5, s5, s7")
    a.srd(12, 4, 576 * 9216)
    a.srd(8, 26, XN_BYTES, XN_OFF)
    a.srd(16, 26, HO_BYTES, HO_OFF)

    def dma_ops(ks):
        ops = []
        for i in range(4):
            def f(i=i):
                if i == 0:
                    a(f"s_mov_b32 s31, {ks*32*9216}")
                a(f"s_add_u32 m0, s29, {(ks%NR)*KSB + i*1024}")
                if i == 3:
                    a("s_mov_b64 exec, 0xffff")
                else:
                    a("s_nop 0")
                a.vmi(f"buffer_load_dwordx4 v{VB+i}, s[12:15], s31 offen lds", f"dma{ks}")
                if i == 3:
                    a("s_mov_b64 exec, -1")
            ops.append(f)
        return ops

    def aload_ops(ks):
        ops = []
        for i in range(RT):
            def f(i=i):
                if i == 0:
                    a(f"s_mov_b32 s32, {ks*1024}")
                r = AF + (ks % 3) * 8 + i * 4
                a.vmi(f"buffer_load_dwordx4 v[{r}:{r+3}], v{VA+i}, s[8:11], s32 offen", f"a{ks}")
            ops.append(f)
        return ops

    a.stamp(1)
    for ks in range(2):
        for f in dma_ops(ks): f()
        for f in aload_ops(ks): f()
    nxt = [2]
    a.vdiv(2, 1, 6, 64, 30)
    a("v_mul_u32_u24 v3, 6, v2")
    a("v_sub_u32 v3, v1, v3")
    a("v_min_u32 v2, 8, v2")
    a("v_mul_u32_u24 v2, 9216, v2")
    a("v_lshl_add_u32 v2, v3, 6, v2")
    a("s_lshl_b32 s23, s22, 3")
    a("s_add_u32 s23, s23, s20")
    a("s_mul_i32 s23, s23, 9*9216")
    a("s_mul_i32 s24, s21, 384")
    a("s_add_u32 s23, s23, s24")
    a.srd(52, 60, 576 * 9216)
    a.srd(44, 62, 576 * 9216)
    a.vmi("buffer_load_dword v3, v2, s[52:55], s23 offen", "pf0")
    a.vmi("buffer_load_dword v3, v2, s[44:47], s23 offen", "pf0")
    a.srd(44, 40, 4608 * 1152)
    a.srd(48, 42, 576 * 1152)
    a("v_lshlrev_b32 v9, 6, v1")
    a("s_lshl_b32 s23, s39, 3")
    a("s_add_u32 s23, s23, s20")
    a("s_mul_i32 s23, s23, 2*4096")
    a("s_lshr_b32 s24, s38, 1")
    a("s_mul_i32 s25, s24, 1344*1152")
    a("s_add_u32 s25, s25, s23")
    a(f"s_sub_u32 s34, s23, {576*1152}")
    a(f"s_cmp_ge_u32 s23, {576*1152}")
    a("s_cselect_b32 s34, s34, 0x40000000")
    a("s_cmp_eq_u32 s24, 3")
    a("s_cselect_b32 s34, s34, 0x40000000")
    def pf_ops():
        ops = []
        for i in range(2):
            def f():
                a.vmi(f"buffer_load_dword v2, v9, s[44:47], s25 offen", "pf")
                a.vmi(f"buffer_load_dword v3, v9, s[48:51], s34 offen", "pf")
                a("s_add_u32 s25, s25, 4096")
                a("s_add_u32 s34, s34, 4096")
            ops.append(f)
        return ops
    a.stamp(2)
    if os.environ.get("PRIO"):
        a("s_cmp_ge_u32 s20, 4")
        a("s_cbranch_scc0 L_ffn_noprio")
        a("s_setprio 1")
        a.lab("L_ffn_noprio")
    pend = []
    NF = 2 * NT
    total = 18 * NF

    def read_frag(m):
        ks = m // NF
        f = m % NF
        if f == 0:
            a.wait_vm(f"dma{ks}")
            a("s_barrier")
            if ks == 0:
                a.stamp(3)
            a(f"v_add_u32 v{VRC + ks % 2}, {(ks % NR) * KSB}, v{VRB}")
            k = 0
            while nxt[0] < 18 and nxt[0] <= ks + PD and k < 2:
                pend.extend(dma_ops(nxt[0]))
                nxt[0] += 1
                k += 1
            if ks == 4:
                pend.extend(pf_ops())
        off = (MAT if f >= NT else 0) + (f % NT) * 32
        r = WF + (m % RING) * 4
        a.lgi(f"ds_read_b64_tr_b16 v[{r}:{r+1}], v{VRC + ks % 2} offset:{off}", f"w{m}")
        a.lgi(f"ds_read_b64_tr_b16 v[{r+2}:{r+3}], v{VRC + ks % 2} offset:{off + 8*PITCH}", f"w{m}")

    for m in range(D):
        read_frag(m)
    for n in range(total):
        ks = n // NF
        f = n % NF
        if n + D < total:
            read_frag(n + D)
        if f == 0:
            a.wait_vm(f"a{ks}")
            if ks + 2 < 18:
                pend[0:0] = aload_ops(ks + 2)
        a.wait_lg(f"w{n}")
        r = WF + (n % RING) * 4
        for i in range(RT):
            ar = AF + (ks % 3) * 8 + i * 4
            acc = accG(i, f) if f < NT else accU(i, f - NT)
            c = "0" if ks == 0 else acc
            a(f"v_mfma_f32_16x16x32_bf16 {acc}, v[{r}:{r+3}], v[{ar}:{ar+3}], {c}")
        if pend and n % 2 == 1:
            pend.pop(0)()
    assert not pend
    a.stamp(4)
    a("s_nop 7")
    a("s_nop 3")
    a("s_mul_i32 s24, s21, 6")
    a("s_mul_i32 s25, s28, 162")
    a("s_add_u32 s24, s24, s25")
    a("s_lshl_b32 s24, s24, 10")

    def htile(i, t, dst):
        for r in range(4):
            a(f"v_accvgpr_read_b32 v{2+r}, a{(i*NT+t)*4+r}")
        k, b = accU_idx(i, t)
        if k == "a":
            for r in range(4):
                a(f"v_accvgpr_read_b32 v{10+r}, a{b+r}")
            b = 10
        for r in range(4):
            a(f"v_max_f32 v{2+r}, 0, v{2+r}")
        for r in range(4):
            a(f"v_mul_f32 v{2+r}, v{2+r}, v{b+r}")
        a(f"v_cvt_pk_bf16_f32 v{dst}, v2, v3")
        a(f"v_cvt_pk_bf16_f32 v{dst+1}, v4, v5")

    cnt = 0
    for i in range(RT):
        a(f"s_add_u32 s25, s24, {i*162*1024}")
        a(f"s_add_u32 s33, s25, 4096")
        for blk in range(6):
            dst = AF + (cnt % 8) * 4; cnt += 1
            htile(i, 2 * blk, dst)
            htile(i, 2 * blk + 1, dst + 2)
            if blk >= 4:
                a(f"buffer_store_dwordx4 v[{dst}:{dst+3}], v{VL16}, s[16:19], s33 offen offset:{(blk-4)*1024}")
            else:
                a(f"buffer_store_dwordx4 v[{dst}:{dst+3}], v{VL16}, s[16:19], s25 offen offset:{blk*1024}")
    a.stamp(5)
    if "stamp" in EXP:
        a("s_waitcnt vmcnt(0) lgkmcnt(0)")
        a.stamp(6)
        a("s_waitcnt lgkmcnt(0)")
        a.stamp_out(7, 8)


def gen_qkv_part(a):
    import struct
    NR = 4
    KS = 36864
    VB = 10
    VR = 15
    VL16 = 22
    VT = 23
    VW = 31
    AF = 46
    WF = 86
    AV = 104
    P = 968

    def acc_idx(i, j):
        n = i * 7 + j
        if n < 32:
            return ("a", n * 4)
        return ("v", AV + (n - 32) * 4)

    def acc(i, j):
        k, b = acc_idx(i, j)
        return f"{k}[{b}:{b+3}]"

    a("s_lshr_b32 s21, s38, 1")
    a("s_and_b32 s22, s38, 1")
    a("s_lshl_b32 s22, s22, 3")
    a("s_add_u32 s22, s22, s39")
    a("s_sub_u32 s22, s22, 24")
    a(f"v_lshlrev_b32 v{VL16}, 4, v1")
    a("s_lshl_b32 s28, s22, 3")
    a("s_lshr_b32 s35, s20, 2")
    a("s_and_b32 s53, s20, 3")
    a("s_mul_i32 s25, s21, 288")
    a("s_lshr_b32 s24, s20, 1")
    a("s_mul_i32 s24, s24, 1152")
    a("s_add_u32 s25, s25, s24")
    a("s_and_b32 s24, s20, 1")
    a("s_mul_i32 s24, s24, 288")
    a("s_sub_u32 s23, s28, 1")
    a("s_cmp_ge_u32 s20, 6")
    a("s_cselect_b64 s[30:31], -1, 0")
    for i in range(5):
        a(f"s_add_u32 s29, s24, {64*i}")
        a("v_add_u32 v2, s29, v1")
        a.vdiv(5, 2, 18, 640, 33)
        a("v_mul_u32_u24 v6, 18, v5")
        a("v_sub_u32 v6, v2, v6")
        a("v_min_u32 v5, 31, v5")
        swapbits23(a, 9, 5, 7)
        a("v_mul_u32_u24 v9, 3456, v9")
        a("v_lshl_add_u32 v9, v6, 4, v9")
        a("v_add_u32 v9, s25, v9")
        a("v_lshrrev_b32 v8, 6, v2")
        a("v_add_u32 v8, s23, v8")
        a("v_max_i32 v8, 0, v8")
        a("v_mul_u32_u24 v8, 18432, v8")
        a("v_and_b32 v7, 63, v2")
        a("v_lshl_add_u32 v8, v7, 4, v8")
        a(f"v_cndmask_b32 v{VB+i}, v9, v8, s[30:31]")
    tr_lane_part(a, 2, 288)
    a("v_and_b32 v4, 15, v1")
    a(f"v_mul_u32_u24 v4, {P}, v4")
    a(f"s_mul_i32 s23, s35, {4*16*P}")
    a("v_add_u32 v4, s23, v4")
    a("v_lshrrev_b32 v5, 4, v1")
    a("v_lshlrev_b32 v5, 2, v5")
    for j in range(7):
        a("s_mul_i32 s23, s53, 7")
        a(f"s_add_u32 s23, s23, {j}")
        a("s_min_u32 s23, s23, 26")
        a("s_mul_i32 s24, s23, 57")
        a("s_lshr_b32 s24, s24, 9")
        a("s_mul_i32 s25, s24, 9")
        a("s_sub_u32 s25, s23, s25")
        a("s_mul_i32 s29, s24, 9216")
        a("s_lshl_b32 s30, s25, 5")
        a("s_add_u32 s29, s29, s30")
        a(f"v_add_u32 v{VR+j}, s29, v2")
    assert all((u * 57) >> 9 == u // 9 for u in range(27))
    a("s_mul_i32 s29, s20, 4608")
    a("s_lshl_b32 s54, s35, 12")
    a("s_waitcnt lgkmcnt(0)")
    a.srd(8, 26, XN_BYTES, XN_OFF)
    a.srd(16, 26, HO_BYTES, HO_OFF)
    a("s_and_b32 s37, s37, 0xffff")
    a(f"s_mov_b32 s33, {576*3456}")
    a(f"s_mov_b32 s34, {32*3456}")
    a("s_cmp_ge_u32 s20, 6")
    a("s_cselect_b32 s12, s8, s36")
    a("s_cselect_b32 s13, s9, s37")
    a("s_cselect_b32 s14, s10, s33")
    a("s_mov_b32 s15, 0x00020000")
    a("s_cselect_b32 s34, 1024, s34")
    a("s_mov_b32 s31, 0")
    a(f"v_add_u32 v45, s54, v{VL16}")

    def dma_ops(ks):
        ops = []
        for i in range(5):
            def f(i=i):
                a(f"s_add_u32 m0, s29, {(ks%NR)*KS + i*1024}")
                if i == 4:
                    a("s_mov_b32 exec_hi, 0")
                else:
                    a("s_nop 0")
                a.vmi(f"buffer_load_dwordx4 v{VB+i}, s[12:15], s31 offen lds", f"dma{ks}")
                if i == 4:
                    a("s_mov_b32 exec_hi, -1")
                    a("s_add_u32 s31, s31, s34")
            ops.append(f)
        return ops

    def addr_op(ks):
        ro = (ks % NR) * KS
        a(f"v_add_u32 v{VT+7}, {ro + 27648}, v45")
        for j in range(7):
            a(f"v_add_u32 v{VT+j}, {ro}, v{VR+j}")

    def areads(ks):
        ops = []
        for i in range(5):
            def f(i=i):
                r = AF + (ks % 2) * 20 + i * 4
                a.lgi(f"ds_read_b128 v[{r}:{r+3}], v{VT+7} offset:{i*1024}", f"ar{ks}")
            ops.append(f)
        return ops

    def wread(m):
        ks, j = m // 7, m % 7
        r = WF + (m % 4) * 4
        a.lgi(f"ds_read_b64_tr_b16 v[{r}:{r+1}], v{VT+j}", f"w{m}")
        a.lgi(f"ds_read_b64_tr_b16 v[{r+2}:{r+3}], v{VT+j} offset:{8*288}", f"w{m}")

    a.stamp(1)
    for ks in range(2):
        for f in dma_ops(ks): f()
    a.vdiv(6, 1, 6, 64, 52)
    a("v_mul_u32_u24 v7, 6, v6")
    a("v_sub_u32 v7, v1, v7")
    a("v_min_u32 v6, 8, v6")
    a("v_mul_u32_u24 v6, 3456, v6")
    a("v_lshl_add_u32 v6, v7, 6, v6")
    a("s_sub_u32 s23, s39, 24")
    a("s_lshl_b32 s23, s23, 3")
    a("s_add_u32 s23, s23, s20")
    a("s_mul_i32 s23, s23, 9*3456")
    a("s_mul_i32 s24, s21, 288")
    a("s_add_u32 s23, s23, s24")
    a.srd(44, 36, 576 * 3456)
    for sec in range(3):
        a.vmi(f"buffer_load_dword v127, v6, s[44:47], s23 offen offset:{sec*1152}", "pf0")
    for j in range(7):
        a("s_mul_i32 s23, s53, 7")
        a(f"s_add_u32 s23, s23, {j}")
        a("s_min_u32 s23, s23, 26")
        a("s_mul_i32 s24, s23, 57")
        a("s_lshr_b32 s24, s24, 9")
        a("s_mul_i32 s25, s24, 9")
        a("s_sub_u32 s25, s23, s25")
        a("s_lshl_b32 s30, s25, 4")
        a("s_mul_i32 s55, s24, 320")
        for e in range(2):
            a(f"v_add_u32 v6, s30, v5")
            if e:
                a("v_add_u32 v6, 2, v6")
            a.vdiv(7, 6, 18, 160, 52)
            a("v_mul_u32_u24 v8, 18, v7")
            a("v_sub_u32 v8, v6, v8")
            a("v_mul_u32_u24 v7, 40, v7")
            a("v_lshl_add_u32 v7, v8, 1, v7")
            a("v_add_u32 v7, v7, v4")
            a(f"v_add_u32 v{VW+2*j+e}, s55, v7")
    a.stamp(2)
    a.wait_vm("dma0")
    a("s_barrier")
    a.stamp(3)
    addr_op(0)
    for f in areads(0): f()
    for m in range(3):
        wread(m)
    for ks in range(18):
        pend = []
        if ks == 0:
            for kk in range(2, NR):
                pend += dma_ops(kk)
        for j in range(7):
            m = ks * 7 + j
            nxt = m + 3
            if nxt < 18 * 7:
                if nxt % 7 == 0:
                    a("s_waitcnt lgkmcnt(0)")
                    a.lg = []
                    a.wait_vm(f"dma{ks+1}")
                    a("s_barrier")
                    addr_op(ks + 1)
                    pend += areads(ks + 1)
                    if ks + NR < 18:
                        pend += dma_ops(ks + NR)
                wread(nxt)
            if j == 0:
                a.wait_lg(f"ar{ks}")
            a.wait_lg(f"w{m}")
            r = WF + (m % 4) * 4
            for i in range(5):
                ar = AF + (ks % 2) * 20 + i * 4
                c = "0" if ks == 0 else acc(i, j)
                a(f"v_mfma_f32_16x16x32_bf16 {acc(i,j)}, v[{r}:{r+3}], v[{ar}:{ar+3}], {c}")
                if pend and i % 2 == 1:
                    pend.pop(0)()
        while pend:
            pend.pop(0)()
    a("s_waitcnt vmcnt(0) lgkmcnt(0)")
    a.stamp(4)
    a.reset()
    a("s_nop 7")
    a("s_barrier")
    T = 46
    n = 0
    for i in range(5):
        for j in range(7):
            k, b = acc_idx(i, j)
            t = T + (n % 8) * 6; n += 1
            if k == "a":
                for r in range(4):
                    a(f"v_accvgpr_read_b32 v{t+r}, a{b+r}")
                b = t
            a(f"v_cvt_pk_bf16_f32 v{t+4}, v{b}, v{b+1}")
            a(f"v_cvt_pk_bf16_f32 v{t+5}, v{b+2}, v{b+3}")
            oo = i * 16 * P
            a(f"ds_write_b32 v{VW+2*j}, v{t+4} offset:{oo}")
            a(f"ds_write_b32 v{VW+2*j+1}, v{t+5} offset:{oo}")
    a("s_waitcnt lgkmcnt(0)")
    a("s_barrier")
    a.stamp(5)
    R = 2
    NJ = R + 7
    a("v_and_b32 v4, 7, v1")
    a("v_lshrrev_b32 v5, 3, v1")
    a("s_lshl_b32 s23, s20, 3")
    a("v_add_u32 v5, s23, v5")
    a("v_and_b32 v6, 1, v5")
    a("v_lshrrev_b32 v5, 1, v5")
    a("v_lshl_add_u32 v5, v5, 2, v6")
    a(f"v_mul_u32_u24 v2, {P}, v5")
    a("v_mul_u32_u24 v6, 40, v4")
    a("v_add_u32 v2, v2, v6")
    Q = 10
    KB = 30
    UP = 50
    LG = 68
    O = 84

    def rdvec(dst, off, tag):
        for p in range(4):
            a.lgi(f"ds_read_b64 v[{dst+2*p}:{dst+2*p+1}], v2 offset:{off+8*p}", tag)
        a.lgi(f"ds_read_b32 v{dst+8}, v2 offset:{off+32}", tag)

    for r in range(R):
        rdvec(Q + 10 * r, (16 + 2 * r) * P, f"q{r}")
    def krow(jj, sec):
        return (16 + 2 * (jj - 7)) * P + sec * 320
    rdvec(KB, krow(0, 1), "k0")
    for jj in range(NJ):
        a.wait_lg(f"k{jj}")
        if jj + 1 < NJ:
            rdvec(KB + ((jj + 1) % 2) * 10, krow(jj + 1, 1), f"k{jj+1}")
        else:
            rdvec(KB + ((jj + 1) % 2) * 10, krow(0, 2), "v0")
        kb = KB + (jj % 2) * 10
        for r in range(R):
            w = r + 7 - jj
            if 0 <= w < 8:
                L = LG + r * 8 + w
                for p in range(9):
                    c = "0" if p == 0 else f"v{L}"
                    a(f"v_dot2_f32_bf16 v{L}, v{Q+10*r+p}, v{kb+p}, {c}")
    sc = struct.unpack("<I", struct.pack("<f", 18 ** -0.5))[0]
    neg = struct.unpack("<I", struct.pack("<f", -1e9))[0]
    l2e = struct.unpack("<I", struct.pack("<f", 1.4426950408889634))[0]
    a("s_nop 2")
    a("s_lshl_b32 s23, s22, 7")
    a("v_add_u32 v7, s23, v5")
    a(f"v_mov_b32 v8, {neg:#x}")
    for r in range(R):
        L = LG + r * 8
        for w in range(8):
            bf16_round_f32(a, L + w, 3)
            a(f"v_mul_f32 v{L+w}, {sc:#x}, v{L+w}")
            bf16_round_f32(a, L + w, 3)
        for w in range(r + 1, 8):
            a(f"v_cmp_le_u32 vcc, {2*(w-r)}, v7")
            a("s_nop 1")
            a(f"v_cndmask_b32 v{L+w}, v8, v{L+w}, vcc")
        a(f"v_max_f32 v6, v{L}, v{L+1}")
        for w in range(2, 8):
            a(f"v_max_f32 v6, v6, v{L+w}")
        for w in range(8):
            a(f"v_sub_f32 v{L+w}, v{L+w}, v6")
            a(f"v_mul_f32 v{L+w}, {l2e:#x}, v{L+w}")
            a(f"v_exp_f32 v{L+w}, v{L+w}")
        a("s_nop 0")
        a(f"v_add_f32 v9, v{L}, v{L+1}")
        for w in range(2, 8):
            a(f"v_add_f32 v9, v9, v{L+w}")
        a("v_rcp_f32 v9, v9")
        a("s_nop 0")
        for w in range(8):
            a(f"v_mul_f32 v{L+w}, v{L+w}, v9")
            bf16_round_f32(a, L + w, 3)
    started = set()
    vb0 = NJ % 2
    for jj in range(NJ):
        a.wait_lg(f"v{jj}")
        vb = KB + ((jj + vb0) % 2) * 10
        for p in range(9):
            a(f"v_lshlrev_b32 v{UP+2*p}, 16, v{vb+p}")
            a(f"v_and_b32 v{UP+2*p+1}, 0xffff0000, v{vb+p}")
        if jj + 1 < NJ:
            rdvec(KB + ((jj + 1 + vb0) % 2) * 10, krow(jj + 1, 2), f"v{jj+1}")
        for r in range(R):
            w = r + 7 - jj
            if 0 <= w < 8:
                L = LG + r * 8 + w
                for d in range(18):
                    if r not in started:
                        a(f"v_mul_f32 v{O+18*r+d}, v{L}, v{UP+d}")
                    else:
                        a(f"v_fmac_f32 v{O+18*r+d}, v{L}, v{UP+d}")
                started.add(r)
    a.stamp(6)
    a("s_mul_i32 s23, s21, 144")
    a("v_mul_u32_u24 v6, 18, v4")
    a("v_add_u32 v6, s23, v6")
    CP = 10
    for p in range(9):
        a(f"v_add_u32 v3, {2*p}, v6")
        a("v_lshrrev_b32 v8, 5, v3")
        a("v_add_u32 v8, 144, v8")
        a("v_lshlrev_b32 v8, 10, v8")
        a("v_bfe_u32 v9, v3, 2, 2")
        a("v_lshl_add_u32 v8, v9, 8, v8")
        a("v_bfe_u32 v9, v3, 4, 1")
        a("v_lshl_add_u32 v8, v9, 3, v8")
        a("v_and_b32 v9, 2, v3")
        a(f"v_lshl_add_u32 v{CP+p}, v9, 1, v8")
    a("s_mov_b32 s23, 162*1024")
    for r in range(R):
        a(f"v_add_u32 v3, {2*r}, v7")
        a("v_lshrrev_b32 v8, 4, v3")
        a("v_mul_lo_u32 v8, v8, s23")
        a("v_and_b32 v9, 15, v3")
        a("v_lshl_add_u32 v8, v9, 4, v8")
        for p in range(9):
            a(f"v_add_u32 v{30+10*r+p}, v8, v{CP+p}")
            a(f"v_cvt_pk_bf16_f32 v{50+10*r+p}, v{O+18*r+2*p}, v{O+18*r+2*p+1}")
            a(f"buffer_store_dword v{50+10*r+p}, v{30+10*r+p}, s[16:19], 0 offen")
    a.stamp(7)
    if "stamp" in EXP:
        a("s_waitcnt vmcnt(0) lgkmcnt(0)")
        a.stamp(8)
        a("s_waitcnt lgkmcnt(0)")
        a.stamp_out(9, 200, 128)


def gen_gemm2(a):
    name = "gemm2_kernel"
    head(a, name)
    NST = 21
    NRING = 8
    PD = 6
    NA = PD + 2
    D = 3
    RING = 5
    STG = 18432
    VB = 10
    VA = 13
    VR = 15
    VL16 = 18
    VX = 19
    AF = 24
    WF = AF + NA * 8
    ACC = WF + RING * 4

    def acc(i, t):
        b = ACC + (i * 9 + t) * 4
        return f"v[{b}:{b+3}]"

    a("s_cmp_ge_u32 s2, 256")
    a("s_cbranch_scc1 L_g2_end")
    a.stamp(0)
    a("s_load_dwordx2 s[4:5], s[0:1], 48")
    a("s_load_dwordx2 s[6:7], s[0:1], 16")
    a("s_load_dwordx2 s[26:27], s[0:1], 72")
    a("s_load_dwordx2 s[40:41], s[0:1], 0")
    a("s_load_dwordx4 s[44:47], s[0:1], 56")
    a("v_and_b32 v1, 63, v0")
    a("v_lshrrev_b32 v2, 6, v0")
    a("s_nop 0")
    a("v_readfirstlane_b32 s20, v2")
    a("s_and_b32 s23, s2, 7")
    a("s_lshr_b32 s24, s2, 3")
    a("s_lshr_b32 s21, s23, 1")
    a("s_and_b32 s23, s23, 1")
    a("s_lshl_b32 s23, s23, 3")
    a("s_lshr_b32 s22, s24, 2")
    a("s_add_u32 s22, s22, s23")
    a("s_and_b32 s34, s24, 3")
    a("s_and_b32 s38, s20, 3")
    a("s_lshr_b32 s39, s20, 2")
    a(f"v_lshlrev_b32 v{VL16}, 4, v1")
    a("s_lshl_b32 s23, s22, 3")
    a("s_lshl_b32 s24, s38, 1")
    a("s_add_u32 s28, s23, s24")
    a("s_mul_i32 s23, s28, 162*1024")
    for i in range(2):
        a(f"s_add_u32 s24, s23, {i*162*1024}")
        a(f"v_add_u32 v{VA+i}, s24, v{VL16}")
    a("s_mul_i32 s23, s20, 144")
    a("s_mul_i32 s25, s34, 288")
    for i in range(3):
        a(f"s_add_u32 s24, s23, {64*i}")
        a("v_add_u32 v2, s24, v1")
        a.vdiv(3, 2, 18, 1152 + 128, 24)
        a("v_mul_u32_u24 v4, 18, v3")
        a("v_sub_u32 v4, v2, v4")
        a("v_min_u32 v3, 63, v3")
        a("v_mul_u32_u24 v5, 1152, v3")
        a("v_lshl_add_u32 v5, v4, 4, v5")
        a(f"v_add_u32 v{VB+i}, s25, v5")
    a("v_lshrrev_b32 v2, 4, v1")
    a("v_lshlrev_b32 v2, 2, v2")
    a("v_bfe_u32 v3, v1, 2, 2")
    a("v_add_u32 v2, v2, v3")
    a("v_mul_u32_u24 v2, 288, v2")
    a("v_and_b32 v3, 3, v1")
    a("v_lshl_add_u32 v2, v3, 3, v2")
    a("s_mul_i32 s23, s39, 9216")
    a("v_add_u32 v2, s23, v2")
    for b in range(3):
        a(f"v_add_u32 v{VR+b}, {b*3*STG}, v2")
    a("s_mul_i32 s29, s20, 2304")
    a(f"s_mul_i32 s35, s21, {NST}")
    a("s_waitcnt lgkmcnt(0)")
    a("s_and_b32 s5, s5, 0xffff")
    a("s_and_b32 s7, s7, 0xffff")
    a("s_mov_b32 s15, 0x00020000")
    a(f"s_mov_b32 s36, {4608*1152}")
    a(f"s_mov_b32 s37, {576*1152}")
    a.srd(8, 26, HO_BYTES, HO_OFF)
    a.srd(16, 26, PART_BYTES, PART_OFF)

    def dma_ops(S):
        ops = []
        for i in range(3):
            def f(i=i):
                if i == 0:
                    a(f"s_add_u32 s30, s35, {S}")
                    a("s_sub_u32 s33, s30, 72")
                    a("s_cmp_lt_u32 s30, 72")
                    a("s_cselect_b32 s12, s4, s6")
                    a("s_cselect_b32 s13, s5, s7")
                    a(f"s_cselect_b32 s14, s36, s37")
                    a("s_cselect_b32 s30, s30, s33")
                    a(f"s_mul_i32 s31, s30, {64*1152}")
                a(f"s_add_u32 m0, s29, {(S%NRING)*STG + i*1024}")
                if i == 2:
                    a("s_mov_b64 exec, 0xffff")
                else:
                    a("s_nop 0")
                a.vmi(f"buffer_load_dwordx4 v{VB+i}, s[12:15], s31 offen lds", f"dma{S}")
                if i == 2:
                    a("s_mov_b64 exec, -1")
            ops.append(f)
        for i in range(2):
            def f(i=i):
                if i == 0:
                    a(f"s_add_u32 s32, s35, {S}")
                    a("s_lshl_b32 s32, s32, 1")
                    a("s_add_u32 s32, s32, s39")
                    a("s_cmp_lt_u32 s32, 162")
                    a("s_cselect_b32 s32, s32, 0x100000")
                    a("s_lshl_b32 s32, s32, 10")
                r = AF + (S % NA) * 8 + i * 4
                a.vmi(f"buffer_load_dwordx4 v[{r}:{r+3}], v{VA+i}, s[8:11], s32 offen", f"a{S}")
            ops.append(f)
        return ops

    a.stamp(1)
    nxt = [0]
    for S in range(2):
        for f in dma_ops(S): f()
    nxt[0] = 2
    a.stamp(2)
    pend = []
    total = NST * 9

    def read_frag(m):
        S = m // 9
        t = m % 9
        if t == 0:
            a.wait_vm(f"dma{S}")
            a("s_barrier")
            if S == 0:
                a.stamp(3)
            k = 0
            while nxt[0] < NST and nxt[0] <= S + PD and k < 2:
                pend.extend(dma_ops(nxt[0]))
                nxt[0] += 1
                k += 1
        rb = S % NRING
        off = (rb % 3) * STG + t * 32
        r = WF + (m % RING) * 4
        a.lgi(f"ds_read_b64_tr_b16 v[{r}:{r+1}], v{VR + rb // 3} offset:{off}", f"w{m}")
        a.lgi(f"ds_read_b64_tr_b16 v[{r+2}:{r+3}], v{VR + rb // 3} offset:{off + 16*288}", f"w{m}")

    for m in range(D):
        read_frag(m)
    for n in range(total):
        S = n // 9
        t = n % 9
        if n + D < total:
            read_frag(n + D)
        if t == 0:
            a.wait_vm(f"a{S}")
        a.wait_lg(f"w{n}")
        r = WF + (n % RING) * 4
        for i in range(2):
            ar = AF + (S % NA) * 8 + i * 4
            c = "0" if S == 0 else acc(i, t)
            a(f"v_mfma_f32_16x16x32_bf16 {acc(i,t)}, v[{r}:{r+3}], v[{ar}:{ar+3}], {c}")
            if pend:
                pend.pop(0)()
    while pend:
        pend.pop(0)()
    a.stamp(4)
    a("s_waitcnt vmcnt(0) lgkmcnt(0)")
    a.reset()
    a("s_nop 7")
    a("s_barrier")
    a("s_lshl_b32 s23, s38, 1")
    a("s_sub_u32 s24, 1, s39")
    a("s_add_u32 s24, s24, s23")
    a("s_mul_i32 s24, s24, 9216")
    a("s_add_u32 s25, s23, s39")
    a("s_mul_i32 s25, s25, 9216")
    a(f"v_add_u32 v2, s24, v{VL16}")
    a(f"v_add_u32 v3, s25, v{VL16}")
    a("s_cmp_eq_u32 s39, 0")
    a("s_cbranch_scc1 L_g2_x0")
    for giv, lab in ((0, None), (1, "L_g2_x0")):
        if lab:
            a.lab(lab)
        for t in range(9):
            a(f"ds_write_b128 v2, {acc(giv, t)} offset:{t*1024}")
        if giv == 0:
            a("s_waitcnt lgkmcnt(0)")
            for r in range(36):
                a(f"v_mov_b32 v{ACC+r}, v{ACC+36+r}")
            a("s_branch L_g2_x1")
    a.lab("L_g2_x1")
    a("s_waitcnt lgkmcnt(0)")
    a("s_barrier")
    for t in range(9):
        a(f"ds_read_b128 {acc(1, t)}, v3 offset:{t*1024}")
    a("s_waitcnt lgkmcnt(0)")
    for r in range(36):
        a(f"v_add_f32 v{ACC+r}, v{ACC+r}, v{ACC+36+r}")
    a("s_add_u32 s28, s28, s39")
    a("s_mul_i32 s24, s28, 36")
    a("s_mul_i32 s25, s34, 9")
    a("s_add_u32 s24, s24, s25")
    a("s_lshl_b32 s24, s24, 9")
    a(f"s_mul_i32 s23, s21, {2048*576*2}")
    a("s_add_u32 s23, s23, s24")
    a("v_lshlrev_b32 v2, 3, v1")
    for t in range(9):
        b = ACC + t * 4
        d = ACC + 36 + t * 2
        a(f"v_cvt_pk_bf16_f32 v{d}, v{b}, v{b+1}")
        a(f"v_cvt_pk_bf16_f32 v{d+1}, v{b+2}, v{b+3}")
        if t % 8 == 0:
            a(f"s_add_u32 s25, s23, {t*512}")
        a(f"buffer_store_dwordx2 v[{d}:{d+1}], v2, s[16:19], s25 offen offset:{(t%8)*512}")
    a.stamp(5)
    if "stamp" in EXP:
        a("s_waitcnt vmcnt(0) lgkmcnt(0)")
        a.stamp(6)
        a("s_waitcnt lgkmcnt(0)")
        a.stamp_out(7, 8, 0)
    a.lab("L_g2_end")
    a("s_endpgm")
    PB = ACC + 36
    nv = PB + 36
    assert nv <= 256, nv
    return kd(name, nv, 64, (nv + 3) // 4 * 4)


def gen_reduce(a):
    name = "reduce_kernel"
    head(a, name)
    U = 4
    a("s_cmp_ge_u32 s2, 288")
    a("s_cbranch_scc1 L_r_end")
    a("s_load_dwordx2 s[4:5], s[0:1], 0")
    a("s_load_dwordx2 s[6:7], s[0:1], 56")
    a("s_load_dwordx2 s[26:27], s[0:1], 72")
    a("v_and_b32 v1, 63, v0")
    a("v_lshrrev_b32 v2, 6, v0")
    a("s_nop 0")
    a("v_readfirstlane_b32 s20, v2")
    a("s_lshl_b32 s21, s2, 2")
    a("s_add_u32 s21, s21, s20")
    a("s_lshl_b32 s22, s21, 11")
    a("s_mul_i32 s23, s21, 7282")
    a("s_lshr_b32 s23, s23, 16")
    assert all((u * 7282) >> 16 == u // 9 for u in range(1152))
    a("s_mul_i32 s24, s23, 9")
    a("s_sub_u32 s24, s21, s24")
    a("v_and_b32 v2, 15, v1")
    a("v_mul_u32_u24 v2, 1152, v2")
    a("v_lshrrev_b32 v3, 4, v1")
    a("v_lshl_add_u32 v2, v3, 3, v2")
    a("s_mul_i32 s25, s23, 18432")
    a("s_lshl_b32 s28, s24, 7")
    a("s_add_u32 s25, s25, s28")
    a("v_lshlrev_b32 v3, 3, v1")
    a("s_waitcnt lgkmcnt(0)")
    a.srd(8, 4, 2048 * 1152)
    a.srd(12, 6, 2048 * 1152)
    a.srd(16, 26, PART_BYTES, PART_OFF)
    PL = 16
    XL = PL + U * 8
    for s_ in range(4):
        a(f"s_add_u32 s28, s22, {s_*2048*576*2}")
        for u in range(U):
            r = PL + u * 8 + 2 * s_
            a(f"buffer_load_dwordx2 v[{r}:{r+1}], v3, s[16:19], s28 offen offset:{u*512}")
    for u in range(U):
        a(f"buffer_load_dwordx2 v[{XL+2*u}:{XL+2*u+1}], v2, s[8:11], s25 offen offset:{u*32}")
    a("s_waitcnt vmcnt(0)")
    for u in range(U):
        for h in range(2):
            a(f"v_lshlrev_b32 v{8+2*h}, 16, v{XL+2*u+h}")
            a(f"v_and_b32 v{9+2*h}, 0xffff0000, v{XL+2*u+h}")
        for h in range(2):
            a(f"v_lshlrev_b32 v{12+2*h}, 16, v{PL+u*8+h}")
            a(f"v_and_b32 v{13+2*h}, 0xffff0000, v{PL+u*8+h}")
        for s_ in range(1, 4):
            for h in range(2):
                r = PL + u * 8 + 2 * s_ + h
                a(f"v_lshlrev_b32 v6, 16, v{r}")
                a(f"v_and_b32 v7, 0xffff0000, v{r}")
                a(f"v_add_f32 v{12+2*h}, v{12+2*h}, v6")
                a(f"v_add_f32 v{13+2*h}, v{13+2*h}, v7")
        for r in range(4):
            a(f"v_add_f32 v{8+r}, v{8+r}, v{12+r}")
        a(f"v_cvt_pk_bf16_f32 v{XL+2*u}, v8, v9")
        a(f"v_cvt_pk_bf16_f32 v{XL+2*u+1}, v10, v11")
        a(f"buffer_store_dwordx2 v[{XL+2*u}:{XL+2*u+1}], v2, s[12:15], s25 offen offset:{u*32}")
    a.lab("L_r_end")
    a("s_endpgm")
    return kd(name, 56, 32, 56)


def main():
    a = A()
    hdr = open(f"cdna_kernels/{NAME}.s.ref").read().split("\n")
    for l in hdr:
        if l.startswith(";") and "@launch" not in l and "Override" not in l and "grid=ceil" not in l:
            a.raw(l)
    npf = int(os.environ.get("NPF", "64"))
    a.raw(f"; @launch kernel=ln_kernel grid=({128+npf},1,1) block=(256,1,1) lds=2048")
    a.raw("; @launch kernel=ka_kernel grid=(256,1,1) block=(512,1,1) lds=159744")
    a.raw("; @launch kernel=gemm2_kernel grid=(256,1,1) block=(512,1,1) lds=147456")
    a.raw("; @launch kernel=reduce_kernel grid=(288,1,1) block=(256,1,1) lds=0")
    a.raw('.amdgcn_target "amdgcn-amd-amdhsa--gfx950"')
    a.raw(".text")
    for g in (gen_ln, gen_ka, gen_gemm2, gen_reduce):
        k = g(a)
        a.raw(k)
    out = sys.argv[1] if len(sys.argv) > 1 else f"cdna_kernels/{NAME}.s"
    open(out, "w").write("\n".join(a.L) + "\n")


main()
```

```python
import sys

NAME = "parallel_sum__sliding_local_dilated__glu_gated_reglu__prompt"
XN_OFF = 0
HO_OFF = 4 << 20
PART_OFF = 32 << 20
XN_BYTES = 128 * 18 * 1024
HO_BYTES = 128 * 162 * 1024
PART_BYTES = 4 * 2048 * 576 * 4


import os
EXP = os.environ.get("EXP", "")


class A:
    def __init__(self):
        self.L = []
        self.vm = []
        self.lg = []
        self.issued = set()
        self.waited = set()

    def __call__(self, s):
        if "nomfma" in EXP and s.startswith("v_mfma"):
            return
        if "nodma" in EXP and s.endswith(" lds"):
            s = "s_nop 0"
        if "noaload" in EXP and s.startswith("buffer_load_dwordx4 v[") :
            s = "s_nop 0"
        if "nods" in EXP and s.startswith("ds_read_b64_tr"):
            return
        if "nostore" in EXP and s.startswith("buffer_store"):
            return
        if os.environ.get("STF") and s.startswith("buffer_store"):
            s = s + " " + os.environ["STF"]
        if "empty" in EXP and s.startswith("s_cmp_ge_u32 s2,"):
            s = "s_cmp_ge_u32 s2, 0"
        self.L.append("    " + s)

    def lab(self, s):
        self.L.append(s + ":")

    def c(self, s):
        self.L.append("    ; " + s)

    def raw(self, s):
        self.L.append(s)

    def reset(self):
        self.vm = []
        self.lg = []
        self.issued = set()
        self.waited = set()

    def vmi(self, instr, tag):
        assert ("v", tag) not in self.waited, f"vm op {tag} issued after wait"
        self(instr)
        self.vm.append(tag)
        self.issued.add(("v", tag))

    def lgi(self, instr, tag):
        assert ("l", tag) not in self.waited, f"lg op {tag} issued after wait"
        self(instr)
        self.lg.append(tag)
        self.issued.add(("l", tag))

    def wait_vm(self, tag):
        assert ("v", tag) in self.issued, f"wait on never-issued vm {tag}"
        self.waited.add(("v", tag))
        idx = [i for i, t in enumerate(self.vm) if t == tag]
        if not idx:
            return
        i = idx[-1]
        n = len(self.vm) - (i + 1)
        assert n <= 63, n
        self(f"s_waitcnt vmcnt({n})")
        self.vm = self.vm[i + 1:]

    def wait_lg(self, tag):
        assert ("l", tag) in self.issued, f"wait on never-issued lg {tag}"
        self.waited.add(("l", tag))
        idx = [i for i, t in enumerate(self.lg) if t == tag]
        if not idx:
            return
        i = idx[-1]
        n = len(self.lg) - (i + 1)
        assert n <= 15, n
        self(f"s_waitcnt lgkmcnt({n})")
        self.lg = self.lg[i + 1:]

    def stamp(self, i):
        if "stamp" not in EXP:
            return
        self(f"s_memtime s[{64+2*i}:{65+2*i}]")
        if i == 0:
            self("s_memrealtime s[96:97]")

    def apples(self):
        pass

    def stamp_out(self, n, wg, base=0):
        if "stamp" not in EXP:
            return
        lab = f"L_st_{len(self.L)}"
        self(f"s_memrealtime s[{64+2*n}:{65+2*n}]")
        self("s_waitcnt lgkmcnt(0)")
        self(f"s_sub_u32 s{64+2*n}, s{64+2*n}, s96")
        self(f"s_add_u32 s{64+2*n}, s{64+2*n}, s64")
        n += 1
        self(f"s_cmp_lg_u32 s2, {wg}")
        self(f"s_cbranch_scc1 {lab}")
        self("s_load_dwordx2 s[60:61], s[0:1], 72")
        self("s_waitcnt lgkmcnt(0)")
        self(f"s_add_u32 s56, s60, {(200<<20) + self.kidx*256}")
        self("s_addc_u32 s57, s61, 0")
        self("s_and_b32 s57, s57, 0xffff")
        self("s_mov_b32 s58, 256")
        self("s_mov_b32 s59, 0x00020000")
        self("v_bfe_u32 v2, v0, 6, 1")
        self("v_lshlrev_b32 v2, 6, v2")
        self(f"v_add_u32 v2, {base}, v2")
        self("v_and_b32 v3, 63, v0")
        self("v_cmp_eq_u32 vcc, 0, v3")
        self("s_and_saveexec_b64 s[62:63], vcc")
        for i in range(n):
            self(f"s_sub_u32 s{64+2*i+1}, s{64+2*i}, s64") if i else None
        for i in range(n):
            self(f"v_mov_b32 v3, s{64+2*i+1 if i else 64}")
            self(f"buffer_store_dword v3, v2, s[56:59], 0 offen offset:{4*i}")
            self("s_nop 1")
        self("s_mov_b64 exec, s[62:63]")
        self.lab(lab)

    def srd(self, s, plo, nbytes, add=0):
        if add:
            self(f"s_add_u32 s{s}, s{plo}, {add}")
            self(f"s_addc_u32 s{s+1}, s{plo+1}, 0")
            self(f"s_and_b32 s{s+1}, s{s+1}, 0xffff")
        else:
            self(f"s_mov_b32 s{s}, s{plo}")
            self(f"s_and_b32 s{s+1}, s{plo+1}, 0xffff")
        self(f"s_mov_b32 s{s+2}, {nbytes}")
        self(f"s_mov_b32 s{s+3}, 0x00020000")

    def vdiv(self, dst, src, d, maxv, tmp_s):
        for sh in range(8, 24):
            m = -(-(1 << sh) // d)
            if m >= (1 << 24) or maxv * m >= (1 << 32):
                continue
            if all((x * m) >> sh == x // d for x in range(maxv)):
                break
        else:
            raise Exception("no magic")
        self(f"s_mov_b32 s{tmp_s}, {m}")
        self(f"v_mul_u32_u24 v{dst}, s{tmp_s}, v{src}")
        self(f"v_lshrrev_b32 v{dst}, {sh}, v{dst}")


def kd(name, vgpr, sgpr, accum):
    if "stamp" in EXP:
        sgpr = 100
    return f""".section .rodata,"a"
.p2align 6
.amdhsa_kernel {name}
  .amdhsa_next_free_vgpr {vgpr}
  .amdhsa_next_free_sgpr {sgpr}
  .amdhsa_accum_offset {accum}
  .amdhsa_group_segment_fixed_size 0
  .amdhsa_kernarg_size 80
  .amdhsa_user_sgpr_count 2
  .amdhsa_user_sgpr_kernarg_segment_ptr 1
  .amdhsa_system_sgpr_workgroup_id_x 1
.end_amdhsa_kernel
.text
"""


def head(a, name):
    a.raw(f".globl {name}")
    a.raw(".p2align 8")
    a.raw(f".type {name},@function")
    a.lab(name)
    a.reset()
    a.kidx = getattr(a, "kidx", -1) + 1


def bf16_round_f32(a, v, tmp):
    a(f"v_cvt_pk_bf16_f32 v{tmp}, v{v}, v{v}")
    a(f"v_lshlrev_b32 v{v}, 16, v{tmp}")


def gen_ln(a):
    import struct
    name = "ln_kernel"
    head(a, name)
    NPF = int(os.environ.get("NPF", "64"))
    a(f"s_cmp_ge_u32 s2, {128+NPF}")
    a("s_cbranch_scc1 L_ln_end")
    a("v_lshrrev_b32 v8, 6, v0")
    a("v_and_b32 v0, 63, v0")
    a("v_readfirstlane_b32 s30, v8")
    a("s_cmp_ge_u32 s2, 128")
    a("s_cbranch_scc1 L_ln_pf")
    a("s_load_dwordx2 s[4:5], s[0:1], 0")
    a("s_load_dwordx2 s[6:7], s[0:1], 72")
    a("v_and_b32 v1, 15, v0")
    a("v_lshrrev_b32 v2, 4, v0")
    a("v_mul_u32_u24 v3, 1152, v1")
    a("v_lshl_add_u32 v3, v2, 4, v3")
    a("s_mul_i32 s3, s2, 18432")
    a("s_lshl_b32 s16, s30, 6")
    a("s_add_u32 s17, s3, s16")
    a("s_lshl_b32 s16, s30, 10")
    a("s_add_u32 s18, s3, s16")
    a("v_mov_b32 v4, 0x3f803f80")
    a("v_lshlrev_b32 v14, 4, v0")
    a("v_xor_b32 v15, 16, v0")
    a("v_lshlrev_b32 v15, 2, v15")
    a("v_xor_b32 v13, 32, v0")
    a("v_lshlrev_b32 v13, 2, v13")
    a("s_cmp_lt_u32 s30, 2")
    a("s_cselect_b32 s19, 0, 0x40000000")
    a("s_waitcnt lgkmcnt(0)")
    a.srd(8, 4, 2048 * 1152)
    a.srd(12, 6, XN_BYTES, XN_OFF)
    B = 16
    for j in range(5):
        if j == 4:
            a("s_add_u32 s17, s17, s19")
        a.vmi(f"buffer_load_dwordx4 v[{B+4*j}:{B+4*j+3}], v3, s[8:11], s17 offen offset:{j*256}", f"x{j}")
    for i in range(5, 13):
        a(f"v_mov_b32 v{i}, 0")
    for j in range(5):
        a.wait_vm(f"x{j}")
        for jj in range(4):
            r = B + 4 * j + jj
            a(f"v_dot2_f32_bf16 v{5+jj}, v{r}, v4, v{5+jj}")
            a(f"v_dot2_f32_bf16 v{9+jj}, v{r}, v{r}, v{9+jj}")
    a("s_nop 3")
    a("v_add_f32 v5, v5, v6")
    a("v_add_f32 v7, v7, v8")
    a("v_add_f32 v9, v9, v10")
    a("v_add_f32 v11, v11, v12")
    a("v_add_f32 v10, v5, v7")
    a("v_add_f32 v11, v9, v11")
    a("v_lshlrev_b32 v7, 3, v0")
    a("s_lshl_b32 s16, s30, 9")
    a("v_add_u32 v7, s16, v7")
    a("ds_write_b64 v7, v[10:11]")
    a("v_lshlrev_b32 v7, 3, v1")
    a("s_waitcnt lgkmcnt(0)")
    a("s_barrier")
    for i in range(16):
        a(f"ds_read_b64 v[{40+2*i}:{41+2*i}], v7 offset:{i*128}")
        if i == 7:
            a("s_waitcnt lgkmcnt(0)")
    a("s_waitcnt lgkmcnt(0)")
    for st in (8, 4, 2, 1):
        for i in range(st):
            a(f"v_add_f32 v{40+2*i}, v{40+2*i}, v{40+2*(i+st)}")
            a(f"v_add_f32 v{41+2*i}, v{41+2*i}, v{41+2*(i+st)}")
    invb = struct.unpack("<I", struct.pack("<f", 1.0 / 576.0))[0]
    a(f"v_mul_f32 v5, {invb:#x}, v40")
    a(f"v_mul_f32 v9, {invb:#x}, v41")
    a("v_fma_f32 v9, -v5, v5, v9")
    a("v_max_f32 v9, 0, v9")
    bf16_round_f32(a, 5, 6)
    bf16_round_f32(a, 9, 6)
    eps = struct.unpack("<I", struct.pack("<f", 1e-5))[0]
    a(f"v_add_f32 v9, {eps:#x}, v9")
    bf16_round_f32(a, 9, 6)
    a("v_sqrt_f32 v9, v9")
    a("s_nop 0")
    bf16_round_f32(a, 9, 6)
    a("v_rcp_f32 v9, v9")
    a("s_nop 0")
    for j in range(5):
        for jj in range(4):
            r = B + 4 * j + jj
            a(f"v_lshlrev_b32 v6, 16, v{r}")
            a(f"v_and_b32 v7, 0xffff0000, v{r}")
            a("v_sub_f32 v6, v6, v5")
            a("v_sub_f32 v7, v7, v5")
            a("v_cvt_pk_bf16_f32 v8, v6, v7")
            a("v_lshlrev_b32 v6, 16, v8")
            a("v_and_b32 v7, 0xffff0000, v8")
            a("v_mul_f32 v6, v6, v9")
            a("v_mul_f32 v7, v7, v9")
            a(f"v_cvt_pk_bf16_f32 v{r}, v6, v7")
        if j == 4:
            a("s_add_u32 s18, s18, s19")
        a(f"buffer_store_dwordx4 v[{B+4*j}:{B+4*j+3}], v14, s[12:15], s18 offen")
        a("s_add_u32 s18, s18, 4096")
    a("s_branch L_ln_end")
    a.lab("L_ln_pf")
    a("s_load_dwordx4 s[4:7], s[0:1], 8")
    a("s_load_dwordx4 s[24:27], s[0:1], 32")
    a("s_load_dwordx2 s[28:29], s[0:1], 48")
    a("s_sub_u32 s3, s2, 128")
    a("s_and_b32 s20, s3, 7")
    a("s_lshr_b32 s21, s3, 3")
    a("s_lshl_b32 s21, s21, 2")
    a("s_add_u32 s21, s21, s30")
    a.vdiv(2, 0, 18, 64, 22)
    a("v_mul_u32_u24 v3, 18, v2")
    a("v_sub_u32 v3, v0, v3")
    a("v_cmp_gt_u32 vcc, 54, v0")
    a("s_nop 1")
    a("v_cndmask_b32 v2, 0, v2, vcc")
    a("v_cndmask_b32 v3, 0, v3, vcc")
    a("v_mul_u32_u24 v4, 9216, v2")
    a("v_lshl_add_u32 v4, v3, 6, v4")
    a("s_mul_i32 s22, s20, 1152")
    a("v_add_u32 v4, s22, v4")
    a.vdiv(6, 3, 6, 64, 22)
    a("v_mul_u32_u24 v7, 6, v6")
    a("v_sub_u32 v7, v3, v7")
    a("v_mul_u32_u24 v5, 3456, v2")
    a("v_mul_u32_u24 v6, 1152, v6")
    a("v_add_u32 v5, v5, v6")
    a("v_lshl_add_u32 v5, v7, 6, v5")
    a("s_lshr_b32 s22, s20, 1")
    a("s_mul_i32 s22, s22, 288")
    a("v_add_u32 v5, s22, v5")
    a("v_lshlrev_b32 v6, 6, v0")
    a("s_waitcnt lgkmcnt(0)")
    a.srd(8, 24, 576 * 9216)
    a.srd(12, 26, 576 * 9216)
    a.srd(16, 4, 576 * 3456)
    a.srd(32, 28, 4608 * 1152)
    a.srd(36, 6, 576 * 1152)
    if not os.environ.get("NOCODEPF"):
        a("s_getpc_b64 s[40:41]")
        a.lab("L_pc_here")
        a("s_add_u32 s40, s40, ka_kernel - L_pc_here")
        a("s_addc_u32 s41, s41, 0")
        a("s_lshl_b32 s22, s21, 12")
        a("v_lshlrev_b32 v15, 6, v0")
        a("v_add_u32 v15, s22, v15")
        a("s_mov_b32 s22, L_code_end - ka_kernel - 4")
        for i in range(2):
            a(f"v_add_u32 v16, {i*32*4096}, v15")
            a("v_min_u32 v16, s22, v16")
            a("global_load_dword v17, v16, s[40:41]")
    PFN = int(os.environ.get("PFN", "2"))
    a(f"s_mul_i32 s22, s21, {3*PFN*9216}")
    for i in range(PFN):
        a(f"s_add_u32 s23, s22, {i*3*9216}")
        a("buffer_load_dword v10, v4, s[8:11], s23 offen")
        a("buffer_load_dword v11, v4, s[12:15], s23 offen")
    a(f"s_mul_i32 s22, s21, {3*PFN*3456}")
    for i in range(PFN):
        a(f"s_add_u32 s23, s22, {i*3*3456}")
        a("buffer_load_dword v12, v5, s[16:19], s23 offen")
    a.lab("L_ln_end")
    a("s_endpgm")
    return kd(name, 88, 44, 88)


def swapbits23(a, dst, src, tmp):
    a(f"v_and_b32 v{dst}, 0x13, v{src}")
    a(f"v_and_b32 v{tmp}, 4, v{src}")
    a(f"v_lshl_or_b32 v{dst}, v{tmp}, 1, v{dst}")
    a(f"v_and_b32 v{tmp}, 8, v{src}")
    a(f"v_lshrrev_b32 v{tmp}, 1, v{tmp}")
    a(f"v_or_b32 v{dst}, v{dst}, v{tmp}")


def tr_lane_part(a, dst, pitch):
    a(f"v_lshrrev_b32 v{dst}, 5, v1")
    a(f"v_lshlrev_b32 v{dst}, 4, v{dst}")
    a("v_bfe_u32 v3, v1, 4, 1")
    a(f"v_lshl_add_u32 v{dst}, v3, 2, v{dst}")
    a("v_bfe_u32 v3, v1, 2, 2")
    a(f"v_add_u32 v{dst}, v{dst}, v3")
    a(f"v_mul_u32_u24 v{dst}, {pitch}, v{dst}")
    a("v_and_b32 v3, 3, v1")
    a(f"v_lshl_add_u32 v{dst}, v3, 3, v{dst}")


def gen_ka(a):
    name = "ka_kernel"
    head(a, name)
    a("s_cmp_ge_u32 s2, 256")
    a("s_cbranch_scc1 L_ka_end")
    a.stamp(0)
    a("s_load_dwordx4 s[4:7], s[0:1], 32")
    a("s_load_dwordx2 s[26:27], s[0:1], 72")
    a("s_load_dwordx2 s[36:37], s[0:1], 8")
    a("s_load_dwordx2 s[40:41], s[0:1], 48")
    a("s_load_dwordx2 s[42:43], s[0:1], 16")
    a("v_and_b32 v1, 63, v0")
    a("v_lshrrev_b32 v2, 6, v0")
    a("s_nop 0")
    a("v_readfirstlane_b32 s20, v2")
    a("s_and_b32 s38, s2, 7")
    a("s_lshr_b32 s39, s2, 3")
    a("s_cmp_ge_u32 s39, 24")
    a("s_cbranch_scc1 L_ka_qkv")
    gen_ffn_part(a)
    a("s_branch L_ka_end")
    a.lab("L_ka_qkv")
    a.reset()
    gen_qkv_part(a)
    a.lab("L_ka_end")
    a("s_endpgm")
    return kd(name, 256, 64, 128)


def gen_ffn_part(a):
    RT = 2
    NT = 12
    D = int(os.environ.get("FD", "4"))
    RING = 5
    NR = 6
    PD = 4
    PITCH = 416
    MAT = 32 * PITCH
    KSB = 2 * MAT
    VB = 10
    VA = 14
    VRB = 16
    VRC = 17
    VL16 = 19
    AF = 20
    WF = 44
    UV = 64

    def accG(i, t):
        b = (i * NT + t) * 4
        return f"a[{b}:{b+3}]"

    def accU_idx(i, t):
        n = i * NT + t
        if n < 8:
            return ("a", 96 + n * 4)
        return ("v", UV + (n - 8) * 4)

    def accU(i, t):
        k, b = accU_idx(i, t)
        return f"{k}[{b}:{b+3}]"

    a("s_mul_i32 s22, s39, 43")
    a("s_lshr_b32 s22, s22, 7")
    a("s_mul_i32 s23, s22, 3")
    a("s_sub_u32 s23, s39, s23")
    a("s_mul_i32 s21, s38, 3")
    a("s_add_u32 s21, s21, s23")
    a(f"v_lshlrev_b32 v{VL16}, 4, v1")
    a("s_lshl_b32 s23, s22, 4")
    a("s_lshl_b32 s24, s20, 1")
    a("s_add_u32 s28, s23, s24")
    a("s_mul_i32 s23, s28, 18432")
    for i in range(RT):
        a(f"s_add_u32 s24, s23, {i*18432}")
        a(f"v_add_u32 v{VA+i}, s24, v{VL16}")
    a("s_and_b32 s24, s20, 3")
    a("s_mul_i32 s25, s24, 208")
    a("s_mul_i32 s23, s21, 384")
    for i in range(4):
        a(f"s_add_u32 s29, s25, {64*i}")
        a("v_add_u32 v2, s29, v1")
        a.vdiv(3, 2, 26, 1024, 30)
        a("v_mul_u32_u24 v4, 26, v3")
        a("v_sub_u32 v4, v2, v4")
        a("v_min_u32 v4, 23, v4")
        a("v_min_u32 v3, 31, v3")
        swapbits23(a, 5, 3, 6)
        a("v_mul_u32_u24 v5, 9216, v5")
        a("v_lshl_add_u32 v5, v4, 4, v5")
        a(f"v_add_u32 v{VB+i}, s23, v5")
    tr_lane_part(a, VRB, PITCH)
    a("s_lshr_b32 s23, s20, 2")
    a(f"s_mul_i32 s29, s23, {MAT}")
    a(f"s_mul_i32 s30, s24, {MAT//4}")
    a("s_add_u32 s29, s29, s30")
    a("s_waitcnt lgkmcnt(0)")
    a("s_mov_b64 s[60:61], s[4:5]")
    a("s_mov_b64 s[62:63], s[6:7]")
    a("s_cmp_eq_u32 s23, 0")
    a("s_cselect_b32 s4, s4, s6")
    a("s_cselect_b32 s5, s5, s7")
    a.srd(12, 4, 576 * 9216)
    a.srd(8, 26, XN_BYTES, XN_OFF)
    a.srd(16, 26, HO_BYTES, HO_OFF)

    def dma_ops(ks):
        ops = []
        for i in range(4):
            def f(i=i):
                if i == 0:
                    a(f"s_mov_b32 s31, {ks*32*9216}")
                a(f"s_add_u32 m0, s29, {(ks%NR)*KSB + i*1024}")
                if i == 3:
                    a("s_mov_b64 exec, 0xffff")
                else:
                    a("s_nop 0")
                a.vmi(f"buffer_load_dwordx4 v{VB+i}, s[12:15], s31 offen lds", f"dma{ks}")
                if i == 3:
                    a("s_mov_b64 exec, -1")
            ops.append(f)
        return ops

    def aload_ops(ks):
        ops = []
        for i in range(RT):
            def f(i=i):
                if i == 0:
                    a(f"s_mov_b32 s32, {ks*1024}")
                r = AF + (ks % 3) * 8 + i * 4
                a.vmi(f"buffer_load_dwordx4 v[{r}:{r+3}], v{VA+i}, s[8:11], s32 offen", f"a{ks}")
            ops.append(f)
        return ops

    a.stamp(1)
    for ks in range(2):
        for f in dma_ops(ks): f()
        for f in aload_ops(ks): f()
    nxt = [2]
    a.vdiv(2, 1, 6, 64, 30)
    a("v_mul_u32_u24 v3, 6, v2")
    a("v_sub_u32 v3, v1, v3")
    a("v_min_u32 v2, 8, v2")
    a("v_mul_u32_u24 v2, 9216, v2")
    a("v_lshl_add_u32 v2, v3, 6, v2")
    a("s_lshl_b32 s23, s22, 3")
    a("s_add_u32 s23, s23, s20")
    a("s_mul_i32 s23, s23, 9*9216")
    a("s_mul_i32 s24, s21, 384")
    a("s_add_u32 s23, s23, s24")
    a.srd(52, 60, 576 * 9216)
    a.srd(44, 62, 576 * 9216)
    a.vmi("buffer_load_dword v3, v2, s[52:55], s23 offen", "pf0")
    a.vmi("buffer_load_dword v3, v2, s[44:47], s23 offen", "pf0")
    a.srd(44, 40, 4608 * 1152)
    a.srd(48, 42, 576 * 1152)
    a("v_lshlrev_b32 v9, 6, v1")
    a("s_lshl_b32 s23, s39, 3")
    a("s_add_u32 s23, s23, s20")
    a("s_mul_i32 s23, s23, 2*4096")
    a("s_lshr_b32 s24, s38, 1")
    a("s_mul_i32 s25, s24, 1344*1152")
    a("s_add_u32 s25, s25, s23")
    a(f"s_sub_u32 s34, s23, {576*1152}")
    a(f"s_cmp_ge_u32 s23, {576*1152}")
    a("s_cselect_b32 s34, s34, 0x40000000")
    a("s_cmp_eq_u32 s24, 3")
    a("s_cselect_b32 s34, s34, 0x40000000")
    def pf_ops():
        ops = []
        for i in range(2):
            def f():
                a.vmi(f"buffer_load_dword v2, v9, s[44:47], s25 offen", "pf")
                a.vmi(f"buffer_load_dword v3, v9, s[48:51], s34 offen", "pf")
                a("s_add_u32 s25, s25, 4096")
                a("s_add_u32 s34, s34, 4096")
            ops.append(f)
        return ops
    a.stamp(2)
    if os.environ.get("PRIO"):
        a("s_cmp_ge_u32 s20, 4")
        a("s_cbranch_scc0 L_ffn_noprio")
        a("s_setprio 1")
        a.lab("L_ffn_noprio")
    pend = []
    NF = 2 * NT
    total = 18 * NF

    def read_frag(m):
        ks = m // NF
        f = m % NF
        if f == 0:
            a.wait_vm(f"dma{ks}")
            a("s_barrier")
            if ks == 0:
                a.stamp(3)
            a(f"v_add_u32 v{VRC + ks % 2}, {(ks % NR) * KSB}, v{VRB}")
            k = 0
            while nxt[0] < 18 and nxt[0] <= ks + PD and k < 2:
                pend.extend(dma_ops(nxt[0]))
                nxt[0] += 1
                k += 1
            if ks == 4:
                pend.extend(pf_ops())
        off = (MAT if f >= NT else 0) + (f % NT) * 32
        r = WF + (m % RING) * 4
        a.lgi(f"ds_read_b64_tr_b16 v[{r}:{r+1}], v{VRC + ks % 2} offset:{off}", f"w{m}")
        a.lgi(f"ds_read_b64_tr_b16 v[{r+2}:{r+3}], v{VRC + ks % 2} offset:{off + 8*PITCH}", f"w{m}")

    for m in range(D):
        read_frag(m)
    for n in range(total):
        ks = n // NF
        f = n % NF
        if n + D < total:
            read_frag(n + D)
        if f == 0:
            a.wait_vm(f"a{ks}")
            if ks + 2 < 18:
                pend[0:0] = aload_ops(ks + 2)
        a.wait_lg(f"w{n}")
        r = WF + (n % RING) * 4
        for i in range(RT):
            ar = AF + (ks % 3) * 8 + i * 4
            acc = accG(i, f) if f < NT else accU(i, f - NT)
            c = "0" if ks == 0 else acc
            a(f"v_mfma_f32_16x16x32_bf16 {acc}, v[{r}:{r+3}], v[{ar}:{ar+3}], {c}")
        if pend and n % 2 == 1:
            pend.pop(0)()
    assert not pend
    a.stamp(4)
    a("s_nop 7")
    a("s_nop 3")
    a("s_mul_i32 s24, s21, 6")
    a("s_mul_i32 s25, s28, 162")
    a("s_add_u32 s24, s24, s25")
    a("s_lshl_b32 s24, s24, 10")

    def htile(i, t, dst):
        for r in range(4):
            a(f"v_accvgpr_read_b32 v{2+r}, a{(i*NT+t)*4+r}")
        k, b = accU_idx(i, t)
        if k == "a":
            for r in range(4):
                a(f"v_accvgpr_read_b32 v{10+r}, a{b+r}")
            b = 10
        for r in range(4):
            a(f"v_max_f32 v{2+r}, 0, v{2+r}")
        for r in range(4):
            a(f"v_mul_f32 v{2+r}, v{2+r}, v{b+r}")
        a(f"v_cvt_pk_bf16_f32 v{dst}, v2, v3")
        a(f"v_cvt_pk_bf16_f32 v{dst+1}, v4, v5")

    cnt = 0
    for i in range(RT):
        a(f"s_add_u32 s25, s24, {i*162*1024}")
        a(f"s_add_u32 s33, s25, 4096")
        for blk in range(6):
            dst = AF + (cnt % 8) * 4; cnt += 1
            htile(i, 2 * blk, dst)
            htile(i, 2 * blk + 1, dst + 2)
            if blk >= 4:
                a(f"buffer_store_dwordx4 v[{dst}:{dst+3}], v{VL16}, s[16:19], s33 offen offset:{(blk-4)*1024}")
            else:
                a(f"buffer_store_dwordx4 v[{dst}:{dst+3}], v{VL16}, s[16:19], s25 offen offset:{blk*1024}")
    a.stamp(5)
    if "stamp" in EXP:
        a("s_waitcnt vmcnt(0) lgkmcnt(0)")
        a.stamp(6)
        a("s_waitcnt lgkmcnt(0)")
        a.stamp_out(7, 8)


def gen_qkv_part(a):
    import struct
    NR = 4
    KS = 36864
    VB = 10
    VR = 15
    VL16 = 22
    VT = 23
    VW = 31
    AF = 46
    WF = 86
    AV = 104
    P = 968

    def acc_idx(i, j):
        n = i * 7 + j
        if n < 32:
            return ("a", n * 4)
        return ("v", AV + (n - 32) * 4)

    def acc(i, j):
        k, b = acc_idx(i, j)
        return f"{k}[{b}:{b+3}]"

    a("s_lshr_b32 s21, s38, 1")
    a("s_and_b32 s22, s38, 1")
    a("s_lshl_b32 s22, s22, 3")
    a("s_add_u32 s22, s22, s39")
    a("s_sub_u32 s22, s22, 24")
    a(f"v_lshlrev_b32 v{VL16}, 4, v1")
    a("s_lshl_b32 s28, s22, 3")
    a("s_lshr_b32 s35, s20, 2")
    a("s_and_b32 s53, s20, 3")
    a("s_mul_i32 s25, s21, 288")
    a("s_lshr_b32 s24, s20, 1")
    a("s_mul_i32 s24, s24, 1152")
    a("s_add_u32 s25, s25, s24")
    a("s_and_b32 s24, s20, 1")
    a("s_mul_i32 s24, s24, 288")
    a("s_sub_u32 s23, s28, 1")
    a("s_cmp_ge_u32 s20, 6")
    a("s_cselect_b64 s[30:31], -1, 0")
    for i in range(5):
        a(f"s_add_u32 s29, s24, {64*i}")
        a("v_add_u32 v2, s29, v1")
        a.vdiv(5, 2, 18, 640, 33)
        a("v_mul_u32_u24 v6, 18, v5")
        a("v_sub_u32 v6, v2, v6")
        a("v_min_u32 v5, 31, v5")
        swapbits23(a, 9, 5, 7)
        a("v_mul_u32_u24 v9, 3456, v9")
        a("v_lshl_add_u32 v9, v6, 4, v9")
        a("v_add_u32 v9, s25, v9")
        a("v_lshrrev_b32 v8, 6, v2")
        a("v_add_u32 v8, s23, v8")
        a("v_max_i32 v8, 0, v8")
        a("v_mul_u32_u24 v8, 18432, v8")
        a("v_and_b32 v7, 63, v2")
        a("v_lshl_add_u32 v8, v7, 4, v8")
        a(f"v_cndmask_b32 v{VB+i}, v9, v8, s[30:31]")
    tr_lane_part(a, 2, 288)
    a("v_and_b32 v4, 15, v1")
    a(f"v_mul_u32_u24 v4, {P}, v4")
    a(f"s_mul_i32 s23, s35, {4*16*P}")
    a("v_add_u32 v4, s23, v4")
    a("v_lshrrev_b32 v5, 4, v1")
    a("v_lshlrev_b32 v5, 2, v5")
    for j in range(7):
        a("s_mul_i32 s23, s53, 7")
        a(f"s_add_u32 s23, s23, {j}")
        a("s_min_u32 s23, s23, 26")
        a("s_mul_i32 s24, s23, 57")
        a("s_lshr_b32 s24, s24, 9")
        a("s_mul_i32 s25, s24, 9")
        a("s_sub_u32 s25, s23, s25")
        a("s_mul_i32 s29, s24, 9216")
        a("s_lshl_b32 s30, s25, 5")
        a("s_add_u32 s29, s29, s30")
        a(f"v_add_u32 v{VR+j}, s29, v2")
    assert all((u * 57) >> 9 == u // 9 for u in range(27))
    a("s_mul_i32 s29, s20, 4608")
    a("s_lshl_b32 s54, s35, 12")
    a("s_waitcnt lgkmcnt(0)")
    a.srd(8, 26, XN_BYTES, XN_OFF)
    a.srd(16, 26, HO_BYTES, HO_OFF)
    a("s_and_b32 s37, s37, 0xffff")
    a(f"s_mov_b32 s33, {576*3456}")
    a(f"s_mov_b32 s34, {32*3456}")
    a("s_cmp_ge_u32 s20, 6")
    a("s_cselect_b32 s12, s8, s36")
    a("s_cselect_b32 s13, s9, s37")
    a("s_cselect_b32 s14, s10, s33")
    a("s_mov_b32 s15, 0x00020000")
    a("s_cselect_b32 s34, 1024, s34")
    a("s_mov_b32 s31, 0")
    a(f"v_add_u32 v45, s54, v{VL16}")

    def dma_ops(ks):
        ops = []
        for i in range(5):
            def f(i=i):
                a(f"s_add_u32 m0, s29, {(ks%NR)*KS + i*1024}")
                if i == 4:
                    a("s_mov_b32 exec_hi, 0")
                else:
                    a("s_nop 0")
                a.vmi(f"buffer_load_dwordx4 v{VB+i}, s[12:15], s31 offen lds", f"dma{ks}")
                if i == 4:
                    a("s_mov_b32 exec_hi, -1")
                    a("s_add_u32 s31, s31, s34")
            ops.append(f)
        return ops

    def addr_op(ks):
        ro = (ks % NR) * KS
        a(f"v_add_u32 v{VT+7}, {ro + 27648}, v45")
        for j in range(7):
            a(f"v_add_u32 v{VT+j}, {ro}, v{VR+j}")

    def areads(ks):
        ops = []
        for i in range(5):
            def f(i=i):
                r = AF + (ks % 2) * 20 + i * 4
                a.lgi(f"ds_read_b128 v[{r}:{r+3}], v{VT+7} offset:{i*1024}", f"ar{ks}")
            ops.append(f)
        return ops

    def wread(m):
        ks, j = m // 7, m % 7
        r = WF + (m % 4) * 4
        a.lgi(f"ds_read_b64_tr_b16 v[{r}:{r+1}], v{VT+j}", f"w{m}")
        a.lgi(f"ds_read_b64_tr_b16 v[{r+2}:{r+3}], v{VT+j} offset:{8*288}", f"w{m}")

    a.stamp(1)
    for ks in range(2):
        for f in dma_ops(ks): f()
    a.vdiv(6, 1, 6, 64, 52)
    a("v_mul_u32_u24 v7, 6, v6")
    a("v_sub_u32 v7, v1, v7")
    a("v_min_u32 v6, 8, v6")
    a("v_mul_u32_u24 v6, 3456, v6")
    a("v_lshl_add_u32 v6, v7, 6, v6")
    a("s_sub_u32 s23, s39, 24")
    a("s_lshl_b32 s23, s23, 3")
    a("s_add_u32 s23, s23, s20")
    a("s_mul_i32 s23, s23, 9*3456")
    a("s_mul_i32 s24, s21, 288")
    a("s_add_u32 s23, s23, s24")
    a.srd(44, 36, 576 * 3456)
    for sec in range(3):
        a.vmi(f"buffer_load_dword v127, v6, s[44:47], s23 offen offset:{sec*1152}", "pf0")
    for j in range(7):
        a("s_mul_i32 s23, s53, 7")
        a(f"s_add_u32 s23, s23, {j}")
        a("s_min_u32 s23, s23, 26")
        a("s_mul_i32 s24, s23, 57")
        a("s_lshr_b32 s24, s24, 9")
        a("s_mul_i32 s25, s24, 9")
        a("s_sub_u32 s25, s23, s25")
        a("s_lshl_b32 s30, s25, 4")
        a("s_mul_i32 s55, s24, 320")
        for e in range(2):
            a(f"v_add_u32 v6, s30, v5")
            if e:
                a("v_add_u32 v6, 2, v6")
            a.vdiv(7, 6, 18, 160, 52)
            a("v_mul_u32_u24 v8, 18, v7")
            a("v_sub_u32 v8, v6, v8")
            a("v_mul_u32_u24 v7, 40, v7")
            a("v_lshl_add_u32 v7, v8, 1, v7")
            a("v_add_u32 v7, v7, v4")
            a(f"v_add_u32 v{VW+2*j+e}, s55, v7")
    a.stamp(2)
    a.wait_vm("dma0")
    a("s_barrier")
    a.stamp(3)
    addr_op(0)
    for f in areads(0): f()
    for m in range(3):
        wread(m)
    for ks in range(18):
        pend = []
        if ks == 0:
            for kk in range(2, NR):
                pend += dma_ops(kk)
        for j in range(7):
            m = ks * 7 + j
            nxt = m + 3
            if nxt < 18 * 7:
                if nxt % 7 == 0:
                    a("s_waitcnt lgkmcnt(0)")
                    a.lg = []
                    a.wait_vm(f"dma{ks+1}")
                    a("s_barrier")
                    addr_op(ks + 1)
                    pend += areads(ks + 1)
                    if ks + NR < 18:
                        pend += dma_ops(ks + NR)
                wread(nxt)
            if j == 0:
                a.wait_lg(f"ar{ks}")
            a.wait_lg(f"w{m}")
            r = WF + (m % 4) * 4
            for i in range(5):
                ar = AF + (ks % 2) * 20 + i * 4
                c = "0" if ks == 0 else acc(i, j)
                a(f"v_mfma_f32_16x16x32_bf16 {acc(i,j)}, v[{r}:{r+3}], v[{ar}:{ar+3}], {c}")
                if pend and i % 2 == 1:
                    pend.pop(0)()
        while pend:
            pend.pop(0)()
    a("s_waitcnt vmcnt(0) lgkmcnt(0)")
    a.stamp(4)
    a.reset()
    a("s_nop 7")
    a("s_barrier")
    T = 46
    n = 0
    for i in range(5):
        for j in range(7):
            k, b = acc_idx(i, j)
            t = T + (n % 8) * 6; n += 1
            if k == "a":
                for r in range(4):
                    a(f"v_accvgpr_read_b32 v{t+r}, a{b+r}")
                b = t
            a(f"v_cvt_pk_bf16_f32 v{t+4}, v{b}, v{b+1}")
            a(f"v_cvt_pk_bf16_f32 v{t+5}, v{b+2}, v{b+3}")
            oo = i * 16 * P
            a(f"ds_write_b32 v{VW+2*j}, v{t+4} offset:{oo}")
            a(f"ds_write_b32 v{VW+2*j+1}, v{t+5} offset:{oo}")
    a("s_waitcnt lgkmcnt(0)")
    a("s_barrier")
    a.stamp(5)
    R = 2
    NJ = R + 7
    a("v_and_b32 v4, 7, v1")
    a("v_lshrrev_b32 v5, 3, v1")
    a("s_lshl_b32 s23, s20, 3")
    a("v_add_u32 v5, s23, v5")
    a("v_and_b32 v6, 1, v5")
    a("v_lshrrev_b32 v5, 1, v5")
    a("v_lshl_add_u32 v5, v5, 2, v6")
    a(f"v_mul_u32_u24 v2, {P}, v5")
    a("v_mul_u32_u24 v6, 40, v4")
    a("v_add_u32 v2, v2, v6")
    Q = 10
    KB = 30
    UP = 50
    LG = 68
    O = 84

    def rdvec(dst, off, tag):
        for p in range(4):
            a.lgi(f"ds_read_b64 v[{dst+2*p}:{dst+2*p+1}], v2 offset:{off+8*p}", tag)
        a.lgi(f"ds_read_b32 v{dst+8}, v2 offset:{off+32}", tag)

    for r in range(R):
        rdvec(Q + 10 * r, (16 + 2 * r) * P, f"q{r}")
    def krow(jj, sec):
        return (16 + 2 * (jj - 7)) * P + sec * 320
    rdvec(KB, krow(0, 1), "k0")
    for jj in range(NJ):
        a.wait_lg(f"k{jj}")
        if jj + 1 < NJ:
            rdvec(KB + ((jj + 1) % 2) * 10, krow(jj + 1, 1), f"k{jj+1}")
        else:
            rdvec(KB + ((jj + 1) % 2) * 10, krow(0, 2), "v0")
        kb = KB + (jj % 2) * 10
        for r in range(R):
            w = r + 7 - jj
            if 0 <= w < 8:
                L = LG + r * 8 + w
                for p in range(9):
                    c = "0" if p == 0 else f"v{L}"
                    a(f"v_dot2_f32_bf16 v{L}, v{Q+10*r+p}, v{kb+p}, {c}")
    sc = struct.unpack("<I", struct.pack("<f", 18 ** -0.5))[0]
    neg = struct.unpack("<I", struct.pack("<f", -1e9))[0]
    l2e = struct.unpack("<I", struct.pack("<f", 1.4426950408889634))[0]
    a("s_nop 2")
    a("s_lshl_b32 s23, s22, 7")
    a("v_add_u32 v7, s23, v5")
    a(f"v_mov_b32 v8, {neg:#x}")
    for r in range(R):
        L = LG + r * 8
        for w in range(8):
            bf16_round_f32(a, L + w, 3)
            a(f"v_mul_f32 v{L+w}, {sc:#x}, v{L+w}")
            bf16_round_f32(a, L + w, 3)
        for w in range(r + 1, 8):
            a(f"v_cmp_le_u32 vcc, {2*(w-r)}, v7")
            a("s_nop 1")
            a(f"v_cndmask_b32 v{L+w}, v8, v{L+w}, vcc")
        a(f"v_max_f32 v6, v{L}, v{L+1}")
        for w in range(2, 8):
            a(f"v_max_f32 v6, v6, v{L+w}")
        for w in range(8):
            a(f"v_sub_f32 v{L+w}, v{L+w}, v6")
            a(f"v_mul_f32 v{L+w}, {l2e:#x}, v{L+w}")
            a(f"v_exp_f32 v{L+w}, v{L+w}")
        a("s_nop 0")
        a(f"v_add_f32 v9, v{L}, v{L+1}")
        for w in range(2, 8):
            a(f"v_add_f32 v9, v9, v{L+w}")
        a("v_rcp_f32 v9, v9")
        a("s_nop 0")
        for w in range(8):
            a(f"v_mul_f32 v{L+w}, v{L+w}, v9")
            bf16_round_f32(a, L + w, 3)
    started = set()
    vb0 = NJ % 2
    for jj in range(NJ):
        a.wait_lg(f"v{jj}")
        vb = KB + ((jj + vb0) % 2) * 10
        for p in range(9):
            a(f"v_lshlrev_b32 v{UP+2*p}, 16, v{vb+p}")
            a(f"v_and_b32 v{UP+2*p+1}, 0xffff0000, v{vb+p}")
        if jj + 1 < NJ:
            rdvec(KB + ((jj + 1 + vb0) % 2) * 10, krow(jj + 1, 2), f"v{jj+1}")
        for r in range(R):
            w = r + 7 - jj
            if 0 <= w < 8:
                L = LG + r * 8 + w
                for d in range(18):
                    if r not in started:
                        a(f"v_mul_f32 v{O+18*r+d}, v{L}, v{UP+d}")
                    else:
                        a(f"v_fmac_f32 v{O+18*r+d}, v{L}, v{UP+d}")
                started.add(r)
    a.stamp(6)
    a("s_mul_i32 s23, s21, 144")
    a("v_mul_u32_u24 v6, 18, v4")
    a("v_add_u32 v6, s23, v6")
    CP = 10
    for p in range(9):
        a(f"v_add_u32 v3, {2*p}, v6")
        a("v_lshrrev_b32 v8, 5, v3")
        a("v_add_u32 v8, 144, v8")
        a("v_lshlrev_b32 v8, 10, v8")
        a("v_bfe_u32 v9, v3, 2, 2")
        a("v_lshl_add_u32 v8, v9, 8, v8")
        a("v_bfe_u32 v9, v3, 4, 1")
        a("v_lshl_add_u32 v8, v9, 3, v8")
        a("v_and_b32 v9, 2, v3")
        a(f"v_lshl_add_u32 v{CP+p}, v9, 1, v8")
    a("s_mov_b32 s23, 162*1024")
    for r in range(R):
        a(f"v_add_u32 v3, {2*r}, v7")
        a("v_lshrrev_b32 v8, 4, v3")
        a("v_mul_lo_u32 v8, v8, s23")
        a("v_and_b32 v9, 15, v3")
        a("v_lshl_add_u32 v8, v9, 4, v8")
        for p in range(9):
            a(f"v_add_u32 v{30+10*r+p}, v8, v{CP+p}")
            a(f"v_cvt_pk_bf16_f32 v{50+10*r+p}, v{O+18*r+2*p}, v{O+18*r+2*p+1}")
            a(f"buffer_store_dword v{50+10*r+p}, v{30+10*r+p}, s[16:19], 0 offen")
    a.stamp(7)
    if "stamp" in EXP:
        a("s_waitcnt vmcnt(0) lgkmcnt(0)")
        a.stamp(8)
        a("s_waitcnt lgkmcnt(0)")
        a.stamp_out(9, 200, 128)


def gen_gemm2(a):
    name = "gemm2_kernel"
    head(a, name)
    NST = 21
    NRING = 8
    PD = 6
    NA = PD + 2
    D = int(os.environ.get("GD", "3"))
    RING = 5
    STG = 18432
    VB = 10
    VA = 13
    VR = 15
    VL16 = 18
    VX = 19
    AF = 24
    WF = AF + NA * 8
    ACC = WF + RING * 4

    def acc(i, t):
        b = ACC + (i * 9 + t) * 4
        return f"v[{b}:{b+3}]"

    a("s_cmp_ge_u32 s2, 256")
    a("s_cbranch_scc1 L_g2_end")
    a.stamp(0)
    a("s_load_dwordx2 s[4:5], s[0:1], 48")
    a("s_load_dwordx2 s[6:7], s[0:1], 16")
    a("s_load_dwordx2 s[26:27], s[0:1], 72")
    a("s_load_dwordx2 s[40:41], s[0:1], 0")
    a("s_load_dwordx4 s[44:47], s[0:1], 56")
    a("v_and_b32 v1, 63, v0")
    a("v_lshrrev_b32 v2, 6, v0")
    a("s_nop 0")
    a("v_readfirstlane_b32 s20, v2")
    a("s_and_b32 s23, s2, 7")
    a("s_lshr_b32 s24, s2, 3")
    a("s_lshr_b32 s21, s23, 1")
    a("s_and_b32 s23, s23, 1")
    a("s_lshl_b32 s23, s23, 3")
    a("s_lshr_b32 s22, s24, 2")
    a("s_add_u32 s22, s22, s23")
    a("s_and_b32 s34, s24, 3")
    a("s_and_b32 s38, s20, 3")
    a("s_lshr_b32 s39, s20, 2")
    a(f"v_lshlrev_b32 v{VL16}, 4, v1")
    a("s_lshl_b32 s23, s22, 3")
    a("s_lshl_b32 s24, s38, 1")
    a("s_add_u32 s28, s23, s24")
    a("s_mul_i32 s23, s28, 162*1024")
    for i in range(2):
        a(f"s_add_u32 s24, s23, {i*162*1024}")
        a(f"v_add_u32 v{VA+i}, s24, v{VL16}")
    a("s_mul_i32 s23, s20, 144")
    a("s_mul_i32 s25, s34, 288")
    for i in range(3):
        a(f"s_add_u32 s24, s23, {64*i}")
        a("v_add_u32 v2, s24, v1")
        a.vdiv(3, 2, 18, 1152 + 128, 24)
        a("v_mul_u32_u24 v4, 18, v3")
        a("v_sub_u32 v4, v2, v4")
        a("v_min_u32 v3, 63, v3")
        a("v_mul_u32_u24 v5, 1152, v3")
        a("v_lshl_add_u32 v5, v4, 4, v5")
        a(f"v_add_u32 v{VB+i}, s25, v5")
    a("v_lshrrev_b32 v2, 4, v1")
    a("v_lshlrev_b32 v2, 2, v2")
    a("v_bfe_u32 v3, v1, 2, 2")
    a("v_add_u32 v2, v2, v3")
    a("v_mul_u32_u24 v2, 288, v2")
    a("v_and_b32 v3, 3, v1")
    a("v_lshl_add_u32 v2, v3, 3, v2")
    a("s_mul_i32 s23, s39, 9216")
    a("v_add_u32 v2, s23, v2")
    for b in range(3):
        a(f"v_add_u32 v{VR+b}, {b*3*STG}, v2")
    a("s_mul_i32 s29, s20, 2304")
    a(f"s_mul_i32 s35, s21, {NST}")
    a("s_waitcnt lgkmcnt(0)")
    a("s_and_b32 s5, s5, 0xffff")
    a("s_and_b32 s7, s7, 0xffff")
    a("s_mov_b32 s15, 0x00020000")
    a(f"s_mov_b32 s36, {4608*1152}")
    a(f"s_mov_b32 s37, {576*1152}")
    a.srd(8, 26, HO_BYTES, HO_OFF)
    a.srd(16, 26, PART_BYTES, PART_OFF)

    def dma_ops(S):
        ops = []
        for i in range(3):
            def f(i=i):
                if i == 0:
                    a(f"s_add_u32 s30, s35, {S}")
                    a("s_sub_u32 s33, s30, 72")
                    a("s_cmp_lt_u32 s30, 72")
                    a("s_cselect_b32 s12, s4, s6")
                    a("s_cselect_b32 s13, s5, s7")
                    a(f"s_cselect_b32 s14, s36, s37")
                    a("s_cselect_b32 s30, s30, s33")
                    a(f"s_mul_i32 s31, s30, {64*1152}")
                a(f"s_add_u32 m0, s29, {(S%NRING)*STG + i*1024}")
                if i == 2:
                    a("s_mov_b64 exec, 0xffff")
                else:
                    a("s_nop 0")
                a.vmi(f"buffer_load_dwordx4 v{VB+i}, s[12:15], s31 offen lds", f"dma{S}")
                if i == 2:
                    a("s_mov_b64 exec, -1")
            ops.append(f)
        for i in range(2):
            def f(i=i):
                if i == 0:
                    a(f"s_add_u32 s32, s35, {S}")
                    a("s_lshl_b32 s32, s32, 1")
                    a("s_add_u32 s32, s32, s39")
                    a("s_cmp_lt_u32 s32, 162")
                    a("s_cselect_b32 s32, s32, 0x100000")
                    a("s_lshl_b32 s32, s32, 10")
                r = AF + (S % NA) * 8 + i * 4
                a.vmi(f"buffer_load_dwordx4 v[{r}:{r+3}], v{VA+i}, s[8:11], s32 offen", f"a{S}")
            ops.append(f)
        return ops

    a.stamp(1)
    nxt = [0]
    for S in range(2):
        for f in dma_ops(S): f()
    nxt[0] = 2
    a.stamp(2)
    pend = []
    total = NST * 9

    def read_frag(m):
        S = m // 9
        t = m % 9
        if t == 0:
            a.wait_vm(f"dma{S}")
            a("s_barrier")
            if S == 0:
                a.stamp(3)
            k = 0
            while nxt[0] < NST and nxt[0] <= S + PD and k < 2:
                pend.extend(dma_ops(nxt[0]))
                nxt[0] += 1
                k += 1
        rb = S % NRING
        off = (rb % 3) * STG + t * 32
        r = WF + (m % RING) * 4
        a.lgi(f"ds_read_b64_tr_b16 v[{r}:{r+1}], v{VR + rb // 3} offset:{off}", f"w{m}")
        a.lgi(f"ds_read_b64_tr_b16 v[{r+2}:{r+3}], v{VR + rb // 3} offset:{off + 16*288}", f"w{m}")

    for m in range(D):
        read_frag(m)
    for n in range(total):
        S = n // 9
        t = n % 9
        if n + D < total:
            read_frag(n + D)
        if t == 0:
            a.wait_vm(f"a{S}")
        a.wait_lg(f"w{n}")
        r = WF + (n % RING) * 4
        for i in range(2):
            ar = AF + (S % NA) * 8 + i * 4
            c = "0" if S == 0 else acc(i, t)
            a(f"v_mfma_f32_16x16x32_bf16 {acc(i,t)}, v[{r}:{r+3}], v[{ar}:{ar+3}], {c}")
            if pend:
                pend.pop(0)()
    while pend:
        pend.pop(0)()
    a.stamp(4)
    a("s_waitcnt vmcnt(0) lgkmcnt(0)")
    a.reset()
    a("s_nop 7")
    a("s_barrier")
    a("s_lshl_b32 s23, s38, 1")
    a("s_sub_u32 s24, 1, s39")
    a("s_add_u32 s24, s24, s23")
    a("s_mul_i32 s24, s24, 9216")
    a("s_add_u32 s25, s23, s39")
    a("s_mul_i32 s25, s25, 9216")
    a(f"v_add_u32 v2, s24, v{VL16}")
    a(f"v_add_u32 v3, s25, v{VL16}")
    a("s_cmp_eq_u32 s39, 0")
    a("s_cbranch_scc1 L_g2_x0")
    for giv, lab in ((0, None), (1, "L_g2_x0")):
        if lab:
            a.lab(lab)
        for t in range(9):
            a(f"ds_write_b128 v2, {acc(giv, t)} offset:{t*1024}")
        if giv == 0:
            a("s_waitcnt lgkmcnt(0)")
            for r in range(36):
                a(f"v_mov_b32 v{ACC+r}, v{ACC+36+r}")
            a("s_branch L_g2_x1")
    a.lab("L_g2_x1")
    a("s_waitcnt lgkmcnt(0)")
    a("s_barrier")
    for t in range(9):
        a(f"ds_read_b128 {acc(1, t)}, v3 offset:{t*1024}")
    a("s_waitcnt lgkmcnt(0)")
    for r in range(36):
        a(f"v_add_f32 v{ACC+r}, v{ACC+r}, v{ACC+36+r}")
    a("s_add_u32 s28, s28, s39")
    a("s_mul_i32 s24, s28, 36")
    a("s_mul_i32 s25, s34, 9")
    a("s_add_u32 s24, s24, s25")
    a("s_lshl_b32 s24, s24, 9")
    a(f"s_mul_i32 s23, s21, {2048*576*2}")
    a("s_add_u32 s23, s23, s24")
    a("v_lshlrev_b32 v2, 3, v1")
    for t in range(9):
        b = ACC + t * 4
        d = ACC + 36 + t * 2
        a(f"v_cvt_pk_bf16_f32 v{d}, v{b}, v{b+1}")
        a(f"v_cvt_pk_bf16_f32 v{d+1}, v{b+2}, v{b+3}")
        if t % 8 == 0:
            a(f"s_add_u32 s25, s23, {t*512}")
        a(f"buffer_store_dwordx2 v[{d}:{d+1}], v2, s[16:19], s25 offen offset:{(t%8)*512}")
    a.stamp(5)
    if "stamp" in EXP:
        a("s_waitcnt vmcnt(0) lgkmcnt(0)")
        a.stamp(6)
        a("s_waitcnt lgkmcnt(0)")
        a.stamp_out(7, 8, 0)
    a.lab("L_g2_end")
    a("s_endpgm")
    PB = ACC + 36
    nv = PB + 36
    assert nv <= 256, nv
    return kd(name, nv, 64, (nv + 3) // 4 * 4)


def gen_reduce(a):
    name = "reduce_kernel"
    head(a, name)
    U = 4
    a("s_cmp_ge_u32 s2, 288")
    a("s_cbranch_scc1 L_r_end")
    a("s_load_dwordx2 s[4:5], s[0:1], 0")
    a("s_load_dwordx2 s[6:7], s[0:1], 56")
    a("s_load_dwordx2 s[26:27], s[0:1], 72")
    a("v_and_b32 v1, 63, v0")
    a("v_lshrrev_b32 v2, 6, v0")
    a("s_nop 0")
    a("v_readfirstlane_b32 s20, v2")
    a("s_lshl_b32 s21, s2, 2")
    a("s_add_u32 s21, s21, s20")
    a("s_lshl_b32 s22, s21, 11")
    a("s_mul_i32 s23, s21, 7282")
    a("s_lshr_b32 s23, s23, 16")
    assert all((u * 7282) >> 16 == u // 9 for u in range(1152))
    a("s_mul_i32 s24, s23, 9")
    a("s_sub_u32 s24, s21, s24")
    a("v_and_b32 v2, 15, v1")
    a("v_mul_u32_u24 v2, 1152, v2")
    a("v_lshrrev_b32 v3, 4, v1")
    a("v_lshl_add_u32 v2, v3, 3, v2")
    a("s_mul_i32 s25, s23, 18432")
    a("s_lshl_b32 s28, s24, 7")
    a("s_add_u32 s25, s25, s28")
    a("v_lshlrev_b32 v3, 3, v1")
    a("s_waitcnt lgkmcnt(0)")
    a.srd(8, 4, 2048 * 1152)
    a.srd(12, 6, 2048 * 1152)
    a.srd(16, 26, PART_BYTES, PART_OFF)
    PL = 16
    XL = PL + U * 8
    for s_ in range(4):
        a(f"s_add_u32 s28, s22, {s_*2048*576*2}")
        for u in range(U):
            r = PL + u * 8 + 2 * s_
            a(f"buffer_load_dwordx2 v[{r}:{r+1}], v3, s[16:19], s28 offen offset:{u*512}")
    for u in range(U):
        a(f"buffer_load_dwordx2 v[{XL+2*u}:{XL+2*u+1}], v2, s[8:11], s25 offen offset:{u*32}")
    a("s_waitcnt vmcnt(0)")
    for u in range(U):
        for h in range(2):
            a(f"v_lshlrev_b32 v{8+2*h}, 16, v{XL+2*u+h}")
            a(f"v_and_b32 v{9+2*h}, 0xffff0000, v{XL+2*u+h}")
        for h in range(2):
            a(f"v_lshlrev_b32 v{12+2*h}, 16, v{PL+u*8+h}")
            a(f"v_and_b32 v{13+2*h}, 0xffff0000, v{PL+u*8+h}")
        for s_ in range(1, 4):
            for h in range(2):
                r = PL + u * 8 + 2 * s_ + h
                a(f"v_lshlrev_b32 v6, 16, v{r}")
                a(f"v_and_b32 v7, 0xffff0000, v{r}")
                a(f"v_add_f32 v{12+2*h}, v{12+2*h}, v6")
                a(f"v_add_f32 v{13+2*h}, v{13+2*h}, v7")
        for r in range(4):
            a(f"v_add_f32 v{8+r}, v{8+r}, v{12+r}")
        a(f"v_cvt_pk_bf16_f32 v{XL+2*u}, v8, v9")
        a(f"v_cvt_pk_bf16_f32 v{XL+2*u+1}, v10, v11")
        a(f"buffer_store_dwordx2 v[{XL+2*u}:{XL+2*u+1}], v2, s[12:15], s25 offen offset:{u*32}")
    a.lab("L_r_end")
    a("s_endpgm")
    a.lab("L_code_end")
    return kd(name, 56, 32, 56)


def main():
    a = A()
    hdr = open(f"cdna_kernels/{NAME}.s.ref").read().split("\n")
    for l in hdr:
        if l.startswith(";") and "@launch" not in l and "Override" not in l and "grid=ceil" not in l:
            a.raw(l)
    npf = int(os.environ.get("NPF", "64"))
    a.raw(f"; @launch kernel=ln_kernel grid=({128+npf},1,1) block=(256,1,1) lds=2048")
    a.raw("; @launch kernel=ka_kernel grid=(256,1,1) block=(512,1,1) lds=159744")
    a.raw("; @launch kernel=gemm2_kernel grid=(256,1,1) block=(512,1,1) lds=147456")
    a.raw("; @launch kernel=reduce_kernel grid=(288,1,1) block=(256,1,1) lds=0")
    a.raw('.amdgcn_target "amdgcn-amd-amdhsa--gfx950"')
    a.raw(".text")
    for g in (gen_ln, gen_ka, gen_gemm2, gen_reduce):
        k = g(a)
        a.raw(k)
    out = sys.argv[1] if len(sys.argv) > 1 else f"cdna_kernels/{NAME}.s"
    open(out, "w").write("\n".join(a.L) + "\n")


main()
```
